```python
import torch

def _softmax(x, axis=-1):
    return torch.softmax(x, dim=axis)
def _gelu(x):
    return torch.nn.functional.gelu(x, approximate="tanh")
def _silu(x):
    return torch.nn.functional.silu(x)
def _sigmoid(x):
    return torch.sigmoid(x)
def _layernorm(x, axis=-1, eps=1e-5):
    m = x.mean(dim=axis, keepdim=True)
    v = x.var(dim=axis, keepdim=True, unbiased=False)
    return (x - m) / torch.sqrt(v + eps)
def _scatter_add(tgt, idx, src, axis=0):
    return tgt.clone().index_add_(axis, idx, src)
def _segment_sum(src, seg, n):
    out = torch.zeros((n,) + src.shape[1:], dtype=src.dtype)
    return out.index_add_(0, seg, src)
def _pad(x, pw):
    flat = tuple(v for pair in reversed(pw) for v in pair)
    return torch.nn.functional.pad(x, flat)

kernel_name = 'sequential_preLN__grouped_kv_mqa__dense_activation_relu__prompt'

def setup_inputs():

    _w = (lambda a: (lambda t: t.to(torch.bfloat16) if t.is_floating_point() else t)(torch.as_tensor(a)))
    def _A_setup():
        B, S, D, H = 1, 2048, 512, 32
        Dh = D // H
        return {
            "x": _w((lambda *s: torch.randn(*s, dtype=torch.bfloat16) * 0.05)(B, S, D)),
            "wq": _w((lambda *s: torch.randn(*s, dtype=torch.bfloat16) * 0.05)(D, H * Dh)),
            "wk": _w((lambda *s: torch.randn(*s, dtype=torch.bfloat16) * 0.05)(D, Dh)),
            "wv": _w((lambda *s: torch.randn(*s, dtype=torch.bfloat16) * 0.05)(D, Dh)),
            "wo": _w((lambda *s: torch.randn(*s, dtype=torch.bfloat16) * 0.05)(H * Dh, D)),
        }
    _A_in = _A_setup()

    def _B_setup():
        B, S, D, Dff = 1, 2048, 512, 1792
        return {
            "x": _w((lambda *s: torch.randn(*s, dtype=torch.bfloat16) * 0.05)(B, S, D)),
            "w1": _w((lambda *s: torch.randn(*s, dtype=torch.bfloat16) * 0.05)(D, Dff)),
            "w2": _w((lambda *s: torch.randn(*s, dtype=torch.bfloat16) * 0.05)(Dff, D)),
        }
    _B_in = _B_setup()

    return {
        "A_x": _A_in["x"],
        "A_wq": _A_in["wq"],
        "A_wk": _A_in["wk"],
        "A_wv": _A_in["wv"],
        "A_wo": _A_in["wo"],
        "B_x": _B_in["x"],
        "B_w1": _B_in["w1"],
        "B_w2": _B_in["w2"],
    }

def reference(A_x, A_wq, A_wk, A_wv, A_wo, B_x, B_w1, B_w2):
    def _A_ref(x, wq, wk, wv, wo):
        B, S, D = x.shape
        H = 32
        Dh = D // H
        q = (lambda x, *d: x.permute(*d))((x @ wq).reshape(B, S, H, Dh), 0, 2, 1, 3)
        k = x @ wk
        v = x @ wv
        scores = torch.einsum("bhqd,bkd->bhqk", q, k) * (Dh ** -0.5)
        p = _softmax(scores, axis=-1)
        o = torch.einsum("bhqk,bkd->bhqd", p, v)
        return (lambda x, *d: x.permute(*d))(o, 0, 2, 1, 3).reshape(B, S, H * Dh) @ wo

    def _B_ref(x, w1, w2):
        h = torch.einsum("bsd,df->bsf", x, w1)
        zero = torch.zeros_like(h)
        h = torch.maximum(h, zero)
        return torch.einsum("bsf,fd->bsd", h, w2)

    x = A_x
    h = x + _A_ref(_layernorm(x, axis=-1), A_wq, A_wk, A_wv, A_wo)
    h2 = h + _B_ref(_layernorm(h, axis=-1), B_w1, B_w2)
    return h2
```

```python
import re

TRANS = ("v_exp_f32", "v_log_f32", "v_rcp_f32", "v_rsq_f32", "v_sqrt_f32")
REG = re.compile(r"^(-|\|)?([vas])(\d+)\|?$|^(-|\|)?([vas])\[(\d+):(\d+)\]\|?$")


def regs(tok):
    tok = tok.strip()
    if tok in ("vcc", "exec", "m0"):
        return {tok}
    if tok in ("vcc_lo", "vcc_hi"):
        return {"vcc"}
    m = REG.match(tok)
    if not m:
        return set()
    if m.group(2):
        return {m.group(2) + m.group(3)}
    return {m.group(5) + str(i) for i in range(int(m.group(6)), int(m.group(7)) + 1)}


class Ins:
    def __init__(self, text):
        self.text = text
        t = text.split(";")[0].strip()
        self.label = t.endswith(":")
        self.op = t.split()[0] if t else ""
        rest = t[len(self.op):].strip()
        toks = [x.strip() for x in re.split(r",(?![^\[]*\])", rest)] if rest else []
        mods = ""
        if toks:
            parts = toks[-1].split()
            toks[-1] = parts[0]
            mods = " ".join(parts[1:])
        self.mods = mods
        op = self.op
        R = [regs(x) for x in toks]
        U = lambda l: set().union(*l) if l else set()
        self.kind = "other"
        self.dst, self.src = set(), set()
        self.a = self.b = self.c = set()
        self.passes = 0
        self.states = 1
        self.wide = False
        if self.label or op.startswith("."):
            self.kind = "meta"; self.states = 0
        elif op == "s_nop":
            self.states = int(toks[0]) + 1
        elif op.startswith("v_mfma") or op.startswith("v_smfmac"):
            self.kind = "mfma"
            self.passes = 4 if "16x16" in op else 8
            self.dst = R[0]; self.a = R[1]; self.b = R[2]
            if op.startswith("v_smfmac"):
                self.c = R[0]; self.b = R[2] | R[3]
            else:
                self.c = R[3]
            self.src = self.a | self.b | self.c
        elif op.startswith("v_"):
            self.kind = "valu"
            self.dst = set(R[0]); self.src = U(R[1:])
            if "swap" in op:
                self.dst = R[0] | R[1]; self.src = R[0] | R[1]
            if op.startswith(("v_fmac", "v_dot2c")) or "_dpp" in op:
                self.src |= R[0]
            if op.startswith("v_cndmask") and len(R) == 3:
                self.src |= {"vcc"}
            if "_co_" in op:
                self.dst |= R[1]
        elif op.startswith(("buffer_", "global_")):
            self.kind = "vmem"
            if "load" in op and not re.search(r"\blds\b", mods):
                self.dst = R[0]; self.src = U(R[1:])
            else:
                self.src = U(R)
                if re.search(r"\blds\b", mods):
                    self.src |= {"m0"}
                elif op.endswith(("x3", "x4")):
                    self.wide = True
                    self.data = R[0] if op.startswith("buffer") else R[1]
        elif op.startswith("ds_"):
            self.kind = "ds"
            if "write" in op:
                self.src = U(R)
            else:
                self.dst = R[0]; self.src = U(R[1:])
        elif op.startswith("s_"):
            self.kind = "salu"
            if R and not op.startswith(("s_cmp", "s_waitcnt", "s_cbranch", "s_branch", "s_barrier", "s_bitcmp")):
                self.dst = R[0]; self.src = U(R[1:])
            else:
                self.src = U(R)
        self.trans = op.startswith(TRANS)
        self.perm = "permlane" in op or "_dpp" in op
        self.rdlane = op.startswith(("v_readlane", "v_readfirstlane", "v_writelane"))
        self.dot = op.startswith("v_dot")


def isv(s):
    return {r for r in s if r[0] in "va" and r != "vcc"}


def iss(s):
    return {r for r in s if r[0] == "s" or r == "vcc"}


def need(p, c):
    n = 0
    if p.kind == "valu":
        dv, dsg = isv(p.dst), iss(p.dst)
        if c.kind == "mfma" and dv & c.src:
            n = max(n, 3 if p.dot else 2)
        if c.kind == "valu":
            if p.trans and not c.trans and dv & c.src: n = max(n, 1)
            if c.perm and dv & c.src: n = max(n, 2)
            if c.rdlane and dv & c.src: n = max(n, 1)
            if dsg & c.src: n = max(n, 4 if c.rdlane else 2)
        if p.dot and dv & (c.src | c.dst):
            same = c.op == p.op
            if not same: n = max(n, 3)
            else:
                ops = [x.strip() for x in c.text.split(";")[0].split(None, 1)[1].split(",")]
                if dv & (regs(ops[1]) | regs(ops[2])): n = max(n, 3)
        if c.kind == "vmem" and dsg & c.src: n = max(n, 5)
    elif p.kind == "mfma":
        big = 12 if p.passes == 8 else 8
        if c.kind in ("valu", "vmem", "ds") and p.dst & (c.src | c.dst): n = max(n, big)
        if c.kind == "mfma":
            if p.dst & (c.a | c.b): n = max(n, big)
            if p.dst & c.c and not (p.dst == c.c and p.passes == c.passes): n = max(n, big - 2)
            if p.dst & c.dst and p.passes != c.passes: n = max(n, big)
        if c.kind == "valu" and p.c & c.dst: n = max(n, 7 if p.passes == 8 else 3)
    elif p.kind == "salu":
        if "m0" in p.dst and c.kind == "vmem" and "m0" in c.src: n = max(n, 1)
    elif p.kind == "vmem" and p.wide:
        if p.data & c.dst: n = max(n, 2 if c.kind in ("valu", "mfma") else 1)
    return n


class Asm:
    def __init__(self):
        self.ins = []
        self.nops = 0

    def __call__(self, text):
        for line in text.split("\n"):
            line = line.strip()
            if line:
                self.one(line)

    def one(self, line):
        c = Ins(line)
        if c.kind != "meta" and not line.startswith(";"):
            d = 0; pad = 0
            for p in reversed(self.ins):
                if d >= 14: break
                pad = max(pad, need(p, c) - d)
                d += p.states
            if pad > 0:
                self.ins.append(Ins(f"s_nop {pad - 1}")); self.nops += pad
        if line.startswith(";"):
            c.kind = "meta"; c.states = 0
        self.ins.append(c)

    def fence(self):
        d = 0; pad = 0
        for p in reversed(self.ins):
            if d >= 14: break
            w = 0
            if p.kind == "mfma": w = 12 if p.passes == 8 else 8
            elif p.kind == "valu": w = 5 if iss(p.dst) else 3
            elif p.kind == "vmem" and p.wide: w = 2
            elif p.kind == "salu" and "m0" in p.dst: w = 1
            pad = max(pad, w - d)
            d += p.states
        if pad > 0:
            self.ins.append(Ins(f"s_nop {pad - 1}"))

    def text(self):
        out = []
        for i in self.ins:
            out.append(i.text if (i.label or i.text.startswith(".")) else "    " + i.text)
        return "\n".join(out) + "\n"


def V(i, n=1):
    return f"v{i}" if n == 1 else f"v[{i}:{i + n - 1}]"


def AR(i, n=1):
    return f"a{i}" if n == 1 else f"a[{i}:{i + n - 1}]"


def S(i, n=1):
    return f"s{i}" if n == 1 else f"s[{i}:{i + n - 1}]"
```

```python
import sys
from asmlib import *

NAME = "sequential_preLN__grouped_kv_mqa__dense_activation_relu__prompt"
OPT = dict(ts=0, force_fb=0, force_sc1=0)
for a in sys.argv[2:]:
    k, v = a.split("="); OPT[k] = int(v)
TS = OPT["ts"]

KVF, WGF, XF, CS, KV = 0x1000, 0x2000, 0x4000, 0x8000, 0x28000
WO, W1, W2, GA, GSTR = 0x50000, 0xD0000, 0x290000, 0x480000, 0x60000
GH, GF, GS = 0x10000, 0x20000, 0x58000
TSA, WSSZ = 0x1100000, 0x1200000
QB, WKVS, LDSSZ, HB = 135168, 143360, 159744, 0x10000
SLOT = 2112
SPIN = 40000
SX, SWQ, SWKV, SPS, SWS, SKV, SOUT, SGA = 4, 8, 12, 16, 20, 24, 28, 32
sW, sM, sG, sTAG = 36, 37, 38, 39
sK = 64
sQd, sCd, sQC, sIsW1, sFV, sSame, sCnt = 80, 81, 82, 83, 84, 85, 96
sXF, sHS, sHI = 90, 91, 92
sONE = 97
vL, vIDX, vKA, vVA, vL16, vL16b, vTS = 0, 1, 2, 5, 8, 9, 13
Q0, Q1, KF, V0, V1, S0, S1, O0, O1 = 16, 20, 24, 28, 32, 36, 52, 68, 84
XR, CA, RS, vXO, WOR, W2A = 144, 152, 154, 155, 160, 224
vWo, vW2, vCS, vPoll = 156, 157, 158, 159
ACC = 80

A = Asm()
tail_code = []
srd = lambda b: S(b, 4)
nts = [0]


def ts():
    if TS:
        A(f"s_memtime s[98:99]\ns_waitcnt lgkmcnt(0)\nv_writelane_b32 v{vTS}, s98, {nts[0]}")
        nts[0] += 1


def mksrd(b, lo, hi, size):
    A(f"s_mov_b32 s{b}, {lo}\ns_mov_b32 s{b+1}, {hi}\ns_mov_b32 s{b+2}, {size}\ns_mov_b32 s{b+3}, 0x20000")


def addsrd(b, lo, hi, off, size):
    A(f"s_add_u32 s{b}, {lo}, {off}\ns_addc_u32 s{b+1}, {hi}, 0\ns_mov_b32 s{b+2}, {size}\ns_mov_b32 s{b+3}, 0x20000")


def mf16(d, a, b, c):
    A(f"v_mfma_f32_16x16x32_bf16 {V(d,4)}, {V(a,4)}, {V(b,4)}, {c if c == 0 else V(c,4)}")


def mf32(d, a, b, c):
    A(f"v_mfma_f32_32x32x16_bf16 {V(d,16)}, {a}, {b}, {c if c == 0 else V(c,16)}")


def wvm(n): A(f"s_waitcnt vmcnt({n})")
def wlg(n): A(f"s_waitcnt lgkmcnt({n})")


def ko(off):
    return f"s{sK + (off >> 12)}", off & 4095


def ld4(dst, addr, s, off, mod=" sc1"):
    so, im = ko(off)
    A(f"buffer_load_dwordx4 {dst}, v{addr}, {srd(s)}, {so} offen offset:{im}{mod}")


uid = [0]
def lab(p):
    uid[0] += 1
    return f"L_{p}{uid[0]}"


def poll(load, reg):
    L, D = lab("poll"), lab("pdone")
    A(f"s_mov_b32 s{sCnt}, {SPIN}")
    A.fence()
    A(f"""{L}:
    {load}
    s_sub_u32 s{sCnt}, s{sCnt}, 1
    s_cbranch_scc1 {D}
    s_waitcnt vmcnt(0)
    v_cmp_ne_u32 vcc, s{sTAG}, v{reg}
    s_nop 0
    s_cmp_eq_u64 vcc, 0
    s_cbranch_scc0 {L}
    {D}:""")


def gstores(lines):
    alt, join = lab("alt"), lab("join")
    A(f"s_cmp_eq_u32 s{sSame}, 0")
    for l in lines:
        c = Ins(l)
        d = 0; pad = 0
        for p in reversed(A.ins):
            if d >= 14: break
            pad = max(pad, need(p, c) - d); d += p.states
        if pad > 0: A(f"s_nop {pad-1}")
    A(f"s_cbranch_scc1 {alt}")
    for l in lines: A(l)
    A(f"{join}:")
    t = [f"{alt}:"] + [l + (" sc1" if l.startswith("buffer_store") else "") for l in lines] + [f"s_branch {join}"]
    tail_code.append("\n".join(t))


def flag_lines(k):
    return ["s_waitcnt vmcnt(0)", "s_mov_b64 exec, 1",
            f"buffer_store_dword v10, off, {srd(SWS)}, s{sXF} offset:{128*k}", "s_mov_b64 exec, -1"]


A(f"""s_cmp_ge_u32 s2, 0x100
s_cbranch_scc1 L_end
s_load_dwordx16 s[40:55], s[0:1], 0
s_load_dwordx4 s[56:59], s[0:1], 64
s_load_dwordx2 s[60:61], s[0:1], 80
s_getpc_b64 s[62:63]
L_pc:
v_lshrrev_b32 v10, 6, v0
v_and_b32 v0, 63, v0
s_lshr_b32 s86, s2, 3
v_readfirstlane_b32 s{sW}, v10
s_and_b32 s3, s2, 7
s_and_b32 s{sM}, s86, 7
s_lshr_b32 s87, s86, 3
s_lshl_b32 s{sG}, s3, 2
s_add_u32 s{sG}, s{sG}, s87
s_getreg_b32 s{sFV}, hwreg(HW_REG_XCC_ID, 0, 4)
s_lshl_b32 s86, s86, 2
s_add_u32 s86, s86, s{sW}
s_lshl_b32 s86, s86, 9
v_and_b32 v10, 3, v0
v_lshl_add_u32 v10, v10, 7, s86
s_mov_b32 s87, L_end-L_pc
v_min_u32 v10, s87, v10
global_load_dword v14, v10, s[62:63]
v_lshlrev_b32 v{vL16}, 4, v0
v_and_b32 v192, 15, v0
v_lshrrev_b32 v193, 4, v0
s_mov_b32 s{sONE}, 0x3f803f80""")
if TS:
    A(f"v_mov_b32 v{vTS}, 0")
ts()
for i in range(4): A(f"v_mov_b32 v{56+i}, s{sONE}")
A(f"""s_lshl_b32 s86, s{sG}, 6
s_lshl_b32 s87, s{sW}, 4
s_add_u32 s88, s86, s87
v_add_u32 v194, s88, v192
v_lshlrev_b32 v194, 10, v194
v_lshl_add_u32 v194, v193, 4, v194
s_lshl_b32 s88, s{sM}, 3
s_add_u32 s88, s88, s86
s_lshl_b32 s88, s88, 3
s_add_u32 s88, s88, s87
v_add_u32 v195, s88, v192
v_lshlrev_b32 v195, 7, v195
s_and_b32 s88, s{sG}, 3
s_lshl_b32 s88, s88, 2
s_add_u32 s88, s88, s{sW}
s_lshl_b32 s88, s88, 15
s_lshl_b32 s89, s{sM}, 7
s_add_u32 s88, s88, s89
v_and_b32 v196, 31, v0
v_lshl_add_u32 v196, v196, 10, s88
s_waitcnt lgkmcnt(0)""")
mksrd(SWS, "s60", "s61", WSSZ)
mksrd(SX, "s40", "s41", 2097152)
A(f"buffer_load_dword v15, off, {srd(SWS)}, 0 sc1")
A(f"buffer_load_dword v14, v195, {srd(SX)}, 0 offen")
mksrd(SWQ, "s42", "s43", 524288)
A(f"buffer_load_dword v14, v196, {srd(SWQ)}, 0 offen")


def x_loads():
    for ks in range(16):
        A(f"buffer_load_dwordx4 {V(64+4*ks,4)}, v194, {srd(SX)}, 0 offen offset:{64*ks}")


def wq_setup():
    A(f"""v_lshrrev_b32 v197, 3, v0
    v_bfe_u32 v198, v0, 4, 1
    v_bfe_u32 v199, v0, 1, 2
    v_xor_b32 v198, v198, v199
    v_lshlrev_b32 v198, 5, v198
    v_and_b32 v199, 1, v0
    v_lshl_add_u32 v198, v199, 4, v198
    v_lshl_add_u32 v197, v197, 10, v198
    s_lshl_b32 s86, s{sW}, 17
    s_add_u32 s86, s86, s89
    v_add_u32 v197, s86, v197
    v_xor_b32 v198, 64, v197""")


def wq_dma():
    A(f"s_lshl_b32 m0, s{sW}, 14\ns_mov_b32 s86, 0")
    for i in range(16):
        if i and i % 4 == 0:
            A("s_add_u32 m0, m0, 4096\ns_add_u32 s86, s86, 4096")
        A(f"buffer_load_dwordx4 v{197+(i&1)}, {srd(SWQ)}, s86 offen offset:{(i&3)*1024} lds")
        if i < 15: A("s_add_u32 s86, s86, 7168")


def pre_setup():
    l1, l2, lj = lab("u1"), lab("u2"), lab("uj")
    A(f"""s_lshl_b32 s86, s2, 2
    s_add_u32 s86, s86, s{sW}
    s_mov_b32 s{sIsW1}, 0
    s_mov_b32 s{SPS+3}, 0x20000
    s_cmp_ge_u32 s86, 576
    s_cbranch_scc1 {l2}
    s_cmp_ge_u32 s86, 128
    s_cbranch_scc1 {l1}
    s_mov_b32 s{SPS}, s48
    s_mov_b32 s{SPS+1}, s49
    s_mov_b32 s{SPS+2}, 524288
    s_and_b32 s87, s86, 7
    s_lshr_b32 s88, s86, 3
    s_lshl_b32 s94, s88, 15
    s_lshl_b32 s95, s87, 16
    s_lshl_b32 s88, s88, 12
    s_add_u32 s95, s95, s88
    s_add_u32 s95, s95, {WO}
    s_mov_b32 s3, 4096
    s_mov_b32 s72, 16384
    s_mov_b32 s65, 1024
    s_mov_b32 s68, 8192
    s_mov_b32 s{sQd}, 2048
    s_mov_b32 s{sCd}, 1024
    s_branch {lj}
    {l1}:
    s_mov_b32 s{SPS}, s52
    s_mov_b32 s{SPS+1}, s53
    s_mov_b32 s{SPS+2}, 1835008
    s_sub_u32 s86, s86, 128
    s_mul_i32 s88, s86, 2341
    s_lshr_b32 s88, s88, 16
    s_mul_i32 s87, s88, 28
    s_sub_u32 s87, s86, s87
    s_mul_i32 s94, s88, 114688
    s_lshl_b32 s95, s87, 16
    s_lshl_b32 s86, s88, 11
    s_add_u32 s95, s95, s86
    s_add_u32 s95, s95, {W1}
    s_lshl_b32 s{sIsW1}, s87, 12
    s_lshl_b32 s86, s88, 2
    s_add_u32 s{sIsW1}, s{sIsW1}, s86
    s_add_u32 s{sIsW1}, s{sIsW1}, {CS}
    s_mov_b32 s3, 28672
    s_mov_b32 s72, 57344
    s_mov_b32 s65, 3584
    s_mov_b32 s68, 14336
    s_mov_b32 s{sQd}, 1024
    s_mov_b32 s{sCd}, 32768
    s_branch {lj}
    {l2}:
    s_mov_b32 s{SPS}, s54
    s_mov_b32 s{SPS+1}, s55
    s_mov_b32 s{SPS+2}, 1835008
    s_sub_u32 s86, s86, 576
    s_and_b32 s87, s86, 7
    s_lshr_b32 s88, s86, 3
    s_lshr_b32 s94, s88, 1
    s_lshl_b32 s94, s94, 6
    s_and_b32 s86, s88, 1
    s_add_u32 s94, s94, s86
    s_lshl_b32 s94, s94, 10
    s_mul_i32 s95, s87, 229376
    s_lshl_b32 s88, s88, 12
    s_add_u32 s95, s95, s88
    s_add_u32 s95, s95, {W2}
    s_mov_b32 s3, 8192
    s_mov_b32 s72, 32768
    s_mov_b32 s65, 2048
    s_mov_b32 s68, 16384
    s_mov_b32 s{sQd}, 2048
    s_mov_b32 s{sCd}, 1024
    {lj}:
    s_lshl_b32 s87, s87, 7
    s_add_u32 s94, s94, s87
    s_add_u32 s{sQC}, s{sQd}, s{sCd}
    s_mov_b32 s64, 0
    s_lshl_b32 s66, s65, 1
    s_add_u32 s67, s66, s65
    s_add_u32 s69, s68, s65
    s_add_u32 s70, s68, s66
    s_add_u32 s71, s68, s67""")
    for j in range(1, 8): A(f"s_add_u32 s{72+j}, s72, s{64+j}")
    A(f"""v_lshrrev_b32 v200, 5, v0
    v_mul_u32_u24 v200, s3, v200
    v_and_b32 v201, 31, v0
    v_lshl_add_u32 v200, v201, 2, v200
    v_add_u32 v200, s94, v200
    v_add_u32 v201, s95, v{vL16}
    v_lshlrev_b32 v202, 6, v0""")


def pre_loads():
    for i in range(16):
        A(f"buffer_load_dword v{128+i}, v200, {srd(SPS)}, s{64+i} offen")


def pre_convert():
    A("s_mov_b32 s86, 0x05040100\ns_mov_b32 s87, 0x07060302")
    wvm(0)
    so = ["0", f"s{sCd}", f"s{sQd}", f"s{sQC}"]
    for q in range(2):
        for ct in range(2):
            d = 144 + (q * 2 + ct) * 4
            for p in range(4):
                A(f"v_perm_b32 v{d+p}, v{128+8*q+2*p+1}, v{128+8*q+2*p}, s{86+ct}")
            A(f"buffer_store_dwordx4 {V(d,4)}, v201, {srd(SWS)}, {so[q*2+ct]} offen sc1")
    L = lab("nocs")
    A(f"s_cmp_eq_u32 s{sIsW1}, 0\ns_cbranch_scc1 {L}")
    for i in range(8):
        for ct in range(2):
            src = 144 + ((i >> 2) * 2 + ct) * 4 + (i & 3)
            A(f"v_dot2_f32_bf16 v{128+ct}, v{src}, v56, {'0' if i == 0 else V(128+ct)}")
    A(f"""v_permlane32_swap_b32 v128, v129
    v_add_f32 v128, v128, v129
    buffer_store_dword v128, v202, {srd(SWS)}, s{sIsW1} offen sc1""")
    A.fence()
    A(f"{L}:")


def stat_step(ks, n0, n1):
    for j in range(n0, n1):
        acc = 52 + (j & 1)
        first = ks == 0 and j < 2
        r = 64 + 4 * ks + j
        A(f"v_dot2_f32_bf16 v{acc}, v{r}, v{r}, {'0' if first else V(acc)}")


def stat_final():
    A(f"""v_add_f32 v52, v52, v53
    v_mov_b32 v53, v52
    v_permlane32_swap_b32 v52, v53
    v_add_f32 v52, v52, v53
    v_mov_b32 v53, v52
    v_permlane16_swap_b32 v52, v53
    v_add_f32 v52, v52, v53
    v_mul_f32 v53, 0x3b000000, v48
    v_mul_f32 v54, v53, v53
    s_mov_b32 s86, 0x3b000000
    v_fma_f32 v52, v52, s86, -v54
    v_max_f32 v52, 0, v52
    v_add_f32 v52, 0x3727c5ac, v52
    v_rsq_f32 v54, v52""")


def get_tag():
    A(f"""v_readfirstlane_b32 s{sTAG}, v15
    s_add_u32 s{sTAG}, s{sTAG}, 0x9e3779b0
    s_and_b32 s{sTAG}, s{sTAG}, -16
    s_or_b32 s{sFV}, s{sFV}, s{sTAG}""")


A(f"s_cmp_lt_u32 s{sM}, 2\ns_cbranch_scc1 L_kv")
x_loads()
wq_setup()
wq_dma()
pre_setup()
pre_loads()
addsrd(SKV, "s60", "s61", KV, 64 * SLOT)
for ks in range(16):
    wvm(47 - ks)
    if ks == 0: get_tag()
    mf16(48, 56, 64 + 4 * ks, 0 if ks == 0 else 48)
    stat_step(ks, 0, 4)
stat_final()
wvm(16)
A("s_branch L_q")

A("L_kv:")
A(f"""s_cmp_eq_u32 s{sM}, 0
s_cselect_b32 s{SWKV}, s44, s46
s_cselect_b32 s{SWKV+1}, s45, s47
s_mov_b32 s{SWKV+2}, 16384
s_mov_b32 s{SWKV+3}, 0x20000
v_and_b32 v203, 16, v0
v_lshlrev_b32 v203, 3, v203
v_xor_b32 v203, v203, v{vL16}
s_lshl_b32 s86, s{sW}, 12
s_add_u32 m0, s86, {WKVS}""")
for i in range(4):
    A(f"buffer_load_dwordx4 v203, {srd(SWKV)}, s86 offen offset:{i*1024} lds")
x_loads()
addsrd(SKV, "s60", "s61", KV, 64 * SLOT)
wq_setup()
pre_setup()
A(f"""v_and_b32 v204, 1, v193
v_lshlrev_b32 v204, 7, v204
v_lshl_add_u32 v204, v192, 3, v204
v_lshl_add_u32 v203, v193, 8, v204
v_add_u32 v203, {WKVS}, v203
v_xor_b32 v204, 0x80, v203
s_lshl_b32 s86, s{sG}, 1
s_lshr_b32 s87, s{sW}, 1
s_add_u32 s86, s86, s87
s_mul_i32 s94, s86, {SLOT}
s_and_b32 s95, s{sW}, 1
v_and_b32 v205, 1, v193
v_lshlrev_b32 v205, 3, v205
v_lshrrev_b32 v206, 1, v193""")
wvm(16)
A("s_barrier")
get_tag()


def kv_body(isv_):
    D = 6
    def rd(ks):
        A(f"ds_read_b64_tr_b16 {V(128+4*ks,2)}, v203 offset:{1024*ks}")
        A(f"ds_read_b64_tr_b16 {V(130+4*ks,2)}, v204 offset:{1024*ks}")
    for ks in range(D): rd(ks)
    for ks in range(16):
        w, x = 128 + 4 * ks, 64 + 4 * ks
        A(f"s_waitcnt vmcnt({15-ks}) lgkmcnt({2*min(D-1, 15-ks)})")
        c = lambda r: 0 if ks == 0 else r
        if isv_: mf16(16, x, w, c(16))
        else: mf16(16, w, x, c(16))
        stat_step(ks, 0, 2)
        if isv_: mf16(32, 56, w, c(32))
        else: mf16(32, w, 56, c(32))
        stat_step(ks, 2, 4)
        mf16(48, 56, x, c(48))
        if ks + D < 16: rd(ks + D)
    stat_final()


A(f"s_cmp_eq_u32 s{sM}, 0\ns_cbranch_scc0 L_v")
kv_body(False)
A(f"""v_lshl_add_u32 v206, v206, 5, v192
s_lshl_b32 s95, s95, 8
s_add_u32 s94, s94, s95
v_lshl_add_u32 v205, v206, 4, v205""")
for r in range(4): A(f"v_fma_f32 v{16+r}, -v53, v{32+r}, v{16+r}")
for r in range(4): A(f"v_mul_f32 v{16+r}, v{16+r}, v54")
A(f"""v_cvt_pk_bf16_f32 v16, v16, v17
v_cvt_pk_bf16_f32 v17, v18, v19
buffer_store_dwordx2 v[16:17], v205, {srd(SKV)}, s94 offen sc1
s_branch L_kvdone
L_v:""")
kv_body(True)
A("v_lshlrev_b32 v207, 4, v193")
for r in range(4):
    A(f"ds_bpermute_b32 v{20+r}, v207, v53 offset:{4*r}\nds_bpermute_b32 v{24+r}, v207, v54 offset:{4*r}")
A(f"""s_mul_i32 s95, s95, 544
s_add_u32 s94, s94, s95
s_add_u32 s94, s94, 1024
v_mul_u32_u24 v206, 272, v206
v_add_u32 v206, v206, v205
v_lshl_add_u32 v205, v192, 4, v206
s_mov_b64 exec, 0x0001000100010001
buffer_store_dwordx2 v[56:57], v206, {srd(SKV)}, s94 offen offset:256 sc1
s_mov_b64 exec, -1""".replace("s_mov_b64 exec, 0x0001000100010001",
                              "s_mov_b32 exec_lo, 0x00010001\ns_mov_b32 exec_hi, 0x00010001"))
wlg(0)
for r in range(4): A(f"v_fma_f32 v{16+r}, -v{20+r}, v32, v{16+r}")
for r in range(4): A(f"v_mul_f32 v{16+r}, v{16+r}, v{24+r}")
A(f"""v_cvt_pk_bf16_f32 v16, v16, v17
v_cvt_pk_bf16_f32 v17, v18, v19
buffer_store_dwordx2 v[16:17], v205, {srd(SKV)}, s94 offen sc1
L_kvdone:""")
wq_dma()
pre_loads()
A(f"""s_lshl_b32 s86, s{sG}, 5
s_lshl_b32 s87, s{sM}, 2
s_add_u32 s86, s86, s87
s_add_u32 s86, s86, s{sW}
s_lshl_b32 s86, s86, 2
s_add_u32 s86, s86, {KVF}
v_mov_b32 v10, s{sTAG}
s_waitcnt vmcnt(32)
s_mov_b64 exec, 1
buffer_store_dword v10, off, {srd(SWS)}, s86 sc1
s_mov_b64 exec, -1""")
wvm(17)

A("L_q:")
ts()
A(f"""v_bfe_u32 v203, v0, 2, 2
v_lshl_add_u32 v203, v193, 3, v203
v_lshlrev_b32 v203, 7, v203
v_and_b32 v204, 3, v0
v_lshl_add_u32 v203, v204, 3, v203
v_bfe_u32 v204, v0, 3, 2
v_lshl_add_u32 v208, v204, 5, v203
v_xor_b32 v209, 32, v208
v_xor_b32 v210, 64, v208
v_xor_b32 v211, 0x60, v208
s_barrier""")
D = 7
def qrd(f):
    ks, hh = f >> 2, f & 3
    r = 160 + 4 * (f & 7)
    A(f"ds_read_b64_tr_b16 {V(r,2)}, v{208+hh} offset:{4096*ks}")
    A(f"ds_read_b64_tr_b16 {V(r+2,2)}, v{208+hh} offset:{4096*ks+512}")
for f in range(D): qrd(f)
for f in range(64):
    ks, hh = f >> 2, f & 3
    r = 160 + 4 * (f & 7)
    wlg(2 * min(D - 1, 63 - f))
    mf16(16 + 4 * hh, r, 64 + 4 * ks, 0 if ks == 0 else 16 + 4 * hh)
    mf16(32 + 4 * hh, r, 56, 0 if ks == 0 else 32 + 4 * hh)
    if f + D < 64: qrd(f + D)
    if f == 31: pre_convert()
A(f"""v_lshrrev_b32 v206, 1, v193
v_lshl_add_u32 v206, v206, 5, v192
v_and_b32 v205, 1, v193
v_lshlrev_b32 v205, 3, v205
v_lshl_add_u32 v205, v206, 4, v205
s_lshr_b32 s86, s{sW}, 1
s_lshl_b32 s86, s86, 10
s_and_b32 s87, s{sW}, 1
s_lshl_b32 s87, s87, 8
s_add_u32 s86, s86, s87
s_add_u32 s86, s86, {QB}
v_add_u32 v205, s86, v205
v_mul_f32 v55, 0x3eb8aa3b, v54""")
for hh in range(4):
    b = 16 + 4 * hh
    for r in range(4): A(f"v_fma_f32 v{b+r}, -v53, v{b+16+r}, v{b+r}")
    for r in range(4): A(f"v_mul_f32 v{b+r}, v{b+r}, v55")
    A(f"""v_cvt_pk_bf16_f32 v{b}, v{b}, v{b+1}
    v_cvt_pk_bf16_f32 v{b+1}, v{b+2}, v{b+3}
    ds_write_b64 v205, {V(b,2)} offset:{2048*hh}""")
A(f"""v_lshrrev_b32 v11, 3, v0
v_lshlrev_b32 v11, 7, v11
v_and_b32 v12, 7, v0
v_lshl_add_u32 v11, v12, 2, v11
s_lshl_b32 s86, s{sW}, 10
s_add_u32 s86, s86, {KVF}
v_add_u32 v11, s86, v11
s_lshl_b32 s87, s{sG}, 3
s_add_u32 s87, s87, s{sM}
s_lshl_b32 s87, s87, 2
s_add_u32 s87, s87, {WGF}
v_mov_b32 v10, s{sFV}
s_waitcnt vmcnt(0) lgkmcnt(0)
s_barrier""")
ts()
A(f"""s_cmp_eq_u32 s{sW}, 0
s_cbranch_scc0 L_noflag
s_mov_b64 exec, 1
buffer_store_dword v10, off, {srd(SWS)}, s87 sc1
s_mov_b64 exec, -1
L_noflag:""")
poll(f"buffer_load_dword v14, v11, {srd(SWS)}, 0 offen sc1", 14)
ts()


def kvdma(i):
    if i & 3 == 0 and i:
        A("s_add_u32 m0, m0, 4096")
    A(f"buffer_load_dwordx4 v{vL16}, {srd(SKV)}, m0 offen offset:{(i&3)*1024} sc1 lds")


A(f"s_mul_i32 m0, s{sW}, 33792")
for i in range(17): kvdma(i)
A(f"""s_lshl_b32 s86, s{sW}, 11
s_add_u32 s86, s86, {QB}
v_add_u32 v11, s86, v{vL16}
ds_read_b128 {V(Q0,4)}, v11
ds_read_b128 {V(Q1,4)}, v11 offset:1024
v_mov_b32 v{vIDX}, 0xdddddddd
v_mov_b32 v{vKA}, v{vL16}
v_add_u32 v{vKA+1}, {31*SLOT}, v{vL16}
v_add_u32 v{vKA+2}, {62*SLOT}, v{vL16}
v_and_b32 v10, 31, v0
v_min_u32 v11, 16, v10
v_lshlrev_b32 v11, 4, v11
v_lshrrev_b32 v12, 5, v0
v_mul_u32_u24 v14, 272, v12
s_mov_b32 s86, 1024
v_add3_u32 v{vVA}, v11, v14, s86
v_add_u32 v{vVA+1}, {31*SLOT}, v{vVA}
v_add_u32 v{vVA+2}, {62*SLOT}, v{vVA}
v_add_u32 v{vL16b}, 0x8000, v{vL16}""")
for i in range(16): A(f"s_mov_b32 s{sK+i}, {4096*i}")
for i in range(32): A(f"v_mov_b32 v{O0+i}, 0")
mksrd(SOUT, "s56", "s57", 2097152)
A(f"s_mul_i32 s86, s{sG}, {GSTR}\ns_add_u32 s86, s86, {GA}")
addsrd(SGA, "s60", "s61", "s86", GSTR)
A(f"""s_mul_i32 s86, s{sM}, 7
s_lshl_b32 s87, s{sW}, 1
s_add_u32 s88, s86, s87
s_lshl_b32 s86, s88, 15
s_add_u32 s86, s86, {W1}
s_add_u32 s{SWQ}, s60, s86
s_addc_u32 s{SWQ+1}, s61, 0
s_mov_b32 s86, 0x8000
s_cmp_eq_u32 s{sW}, 3
s_cselect_b32 s{SWQ+2}, s86, 0x10000
s_lshl_b32 s88, s88, 11
s_add_u32 s88, s88, {CS}
v_lshlrev_b32 v{vCS}, 6, v10
v_lshl_add_u32 v{vCS}, v12, 5, v{vCS}
v_add_u32 v{vCS}, s88, v{vCS}
s_and_b32 s94, s{sW}, 1
s_lshr_b32 s95, s{sW}, 1
s_lshl_b32 s86, s94, 8
v_xor_b32 v11, s86, v{vL16}
s_lshl_b32 s86, s{sM}, 2
s_add_u32 s86, s86, s{sW}
s_lshl_b32 s87, s86, 14
s_add_u32 s87, s87, {WO}
v_add_u32 v{vWo}, s87, v11
s_mul_i32 s87, s86, 57344
s_add_u32 s87, s87, {W2}
v_add_u32 v{vW2}, s87, v11
s_lshl_b32 s87, s{sG}, 9
s_add_u32 s87, s87, {XF}
s_lshl_b32 s86, s86, 2
s_add_u32 s{sXF}, s87, s86
s_lshl_b32 s86, s{sW}, 5
s_add_u32 s87, s87, s86
v_and_b32 v11, 7, v0
v_lshl_add_u32 v{vPoll}, v11, 2, s87
s_lshl_b32 s86, s{sG}, 1
s_add_u32 s86, s86, s95
s_lshl_b32 s86, s86, 15
s_lshl_b32 s87, s{sM}, 1
s_add_u32 s87, s87, s94
s_lshl_b32 s88, s87, 6
s_add_u32 s86, s86, s88
v_lshl_add_u32 v{vXO}, v10, 10, s86
v_lshl_add_u32 v{vXO}, v12, 4, v{vXO}
s_lshl_b32 s87, s87, 12
s_lshl_b32 s86, s95, 10
s_add_u32 s87, s87, s86
s_add_u32 s{sHS}, s87, {GH}
s_mov_b32 s{sHI}, 0
s_mov_b32 s{sHI+1}, -1""")
A(f"""s_and_b32 s86, s{sG}, 3
s_lshl_b32 s86, s86, 2
s_add_u32 s86, s86, s{sW}
s_lshl_b32 s87, s86, 12
s_lshl_b32 s88, s{sM}, 16
s_add_u32 s87, s87, s88
s_add_u32 s87, s87, {WO}
v_lshl_add_u32 v116, v10, 7, s87
s_mul_i32 s86, s86, 14336
s_mul_i32 s88, s{sM}, 229376
s_add_u32 s86, s86, s88
s_add_u32 s86, s86, {W1}
v_lshl_add_u32 v117, v0, 7, s86
v_min_u32 v118, 47, v0
s_add_u32 s86, s86, 8192
v_lshl_add_u32 v118, v118, 7, s86
v_add_u32 v119, {W2-W1}, v117
v_add_u32 v120, {W2-W1}, v118
v_add_u32 v121, {WGF}, v{vL16}""")
wvm(12)
A("s_barrier")
ts()

order = []
for lo, hi in ((0, 2), (2, 8), (8, 16)):
    for ww in range(4): order += [16 * ww + i for i in range(lo, hi)]


def kvaddr(slot):
    b = slot // 31
    return b, (slot - 31 * b) * SLOT


def rdK(n):
    b, o = kvaddr(order[n]); return f"ds_read_b128 {V(KF,4)}, v{vKA+b} offset:{o}"
def rdV(n, h):
    b, o = kvaddr(order[n]); return f"ds_read_b128 {V(V1 if h else V0,4)}, v{vVA+b} offset:{o+544*h}"
def smf(o, a, b):
    A(f"v_smfmac_f32_32x32x32_bf16 {V(o,16)}, {V(a,4)}, {V(b,8)}, v{vIDX}")


stash = []
for i in range(16): stash.append(lambda i=i: ld4(V(WOR + 4 * i, 4), vWo, SWS, 1024 * i))
for i in range(2): stash.append(lambda i=i: ld4(V(XR + 4 * i, 4), vXO, SX, 32 * i, ""))
for i in range(4): stash.append(lambda i=i: ld4(V(100 + 4 * i, 4), vCS, SWS, 2048 * (i >> 1) + 16 * (i & 1)))
for i in range(64): stash.append(lambda i=i: ld4(AR(4 * i, 4), vL16b if i & 1 else vL16, SWQ, 1024 * (i >> 1)))
for i in range(8): stash.append(lambda i=i: ld4(V(W2A + 4 * i, 4), vW2, SWS, 1024 * i))
vm_after_dma = [0]


def wg_check(first):
    for i in range(4):
        if i == 0: A(f"v_xor_b32 v14, s{sFV}, v100")
        else: A(f"v_bitop3_b32 v14, v{100+i}, s{sFV}, v14 bitop3:0xbe")
    A(f"v_cmp_lt_u32 vcc, 15, v14\nv_cmp_ne_u32 s[86:87], 0, v14\ns_cmp_eq_u64 vcc, 0")


def extras(n, pos):
    if n == 7 and pos == 1:
        A(f"buffer_load_dwordx4 v[100:103], v121, {srd(SWS)}, 0 offen sc1")
    if 8 <= n < 16:
        kvdma(17 + 2 * (n - 8) + pos)
    if n == 12 and pos == 1:
        wvm(10)
        wg_check(True)
        A("s_cbranch_scc0 L_wfslow\nL_wfok:")
        A(f"s_lshl_b32 s88, s{sG}, 1\ns_lshr_b64 s[86:87], s[86:87], s88\ns_and_b32 s86, s86, 3")
        A(f"s_cselect_b32 s{sSame}, 0, {0 if OPT['force_sc1'] else 1}")
    if 13 <= n < 16 and (n - 13) * 2 + pos < 5:
        A(f"buffer_load_dword v14, v{116 + (n-13)*2 + pos}, {srd(SWS)}, 0 offen sc1")
        if n == 15: vm_after_dma[0] += 0
    if n >= 16 and stash:
        stash.pop(0)(); vm_after_dma[0] += 1


def tile(sa, sb, oprev, o, q, ins, first=False, last=False):
    for i in range(16):
        A(f"v_exp_f32 v{sa+i}, v{sa+i}")
        if i == 1:
            if not first: smf(oprev, V1, sb + 8)
            ins[0]()
        elif i == 4:
            if not last: mf32(sb, V(KF, 4), V(q, 4), 0)
            ins[1]()
        elif i == 9:
            smf(o, V0, sa)
            ins[2]()


A(rdK(0)); A(rdV(0, 0)); wlg(1)
mf32(S0, V(KF, 4), V(Q0, 4), 0)
for n in range(64):
    def a0(): wlg(0); A(rdV(n, 1))
    def a1():
        if n == 7: wvm(0); A("s_barrier")
        if n == 31: wvm(vm_after_dma[0]); A("s_barrier")
        if n < 63: A(rdK(n + 1))
    def a2(): wlg(1 if n < 63 else 0); extras(n, 0)
    def b0(): wlg(0); extras(n, 1)
    def b1(): pass
    def b2():
        if n < 63: A(rdV(n + 1, 0))
    tile(S0, S1, O1, O0, Q1, (a0, a1, a2), first=(n == 0))
    tile(S1, S0, O0, O1, Q0, (b0, b1, b2), last=(n == 63))
assert not stash
smf(O1, V1, S1 + 8)
ts()

t = Asm(); A_main = A; A = t
A(f"L_wfslow:\ns_mov_b32 s{sCnt}, {SPIN}\nL_wfloop:")
A(f"buffer_load_dwordx4 v[100:103], v121, {srd(SWS)}, 0 offen sc1\ns_sub_u32 s{sCnt}, s{sCnt}, 1\ns_cbranch_scc1 L_wfok")
wvm(0); wg_check(False)
A("s_cbranch_scc0 L_wfloop\ns_branch L_wfok")
tail_code.append(t.text()); A = A_main

A("s_mov_b32 s94, 0x21800000\ns_mov_b32 s95, 0x5d800000")
for i in range(8):
    o = (O0 if i < 4 else O1) + 2 * (i & 3)
    if i == 0: A(f"v_pk_mul_f32 v[10:11], {V(o,2)}, 0")
    else: A(f"v_pk_fma_f32 v[10:11], {V(o,2)}, 0, v[10:11]")
A(f"""v_add_f32 v10, v10, v11
v_add_f32 v11, v10, v{O0+8}
v_add_f32 v12, v10, v{O1+8}
v_cmp_le_f32 vcc, s94, v11
v_cmp_ge_f32 s[86:87], s95, v11
v_cmp_le_f32 s[88:89], s94, v12
v_cmp_ge_f32 s[100:101], s95, v12
s_and_b64 vcc, vcc, s[86:87]
s_and_b64 s[88:89], s[88:89], s[100:101]
s_and_b64 vcc, vcc, s[88:89]
s_cmp_eq_u64 vcc, -1
{'s_branch' if OPT['force_fb'] else 's_cbranch_scc0'} L_fb
L_fbdone:
v_rcp_f32 v10, v{O0+8}
v_rcp_f32 v12, v{O1+8}
s_lshl_b32 s86, s{sM}, 2
s_add_u32 s86, s86, s{sW}
s_lshl_b32 s86, s86, 11""")
for qt, o in enumerate((O0, O1)):
    for p in range(4):
        A(f"v_pk_mul_f32 {V(o+2*p,2)}, {V(o+2*p,2)}, {V(10+2*qt,2)} op_sel_hi:[1,0]")
    for p in range(4):
        A(f"v_cvt_pk_bf16_f32 v{16+4*qt+p}, v{o+2*p}, v{o+2*p+1}")
A(f"v_mov_b32 v10, s{sTAG}")
gstores([f"buffer_store_dwordx4 v[16:19], v{vL16}, {srd(SGA)}, s86 offen",
         f"buffer_store_dwordx4 v[20:23], v{vL16}, {srd(SGA)}, s86 offen offset:1024"] + flag_lines(0))
A("s_barrier")
ts()

t = Asm(); A_main = A; A = t
A("L_fb:")
A.fence()
for qt, (q, o) in enumerate(((Q0, O0), (Q1, O1))):
    l1, l2 = lab("fbm"), lab("fbs")
    A(f"v_mov_b32 v10, 0xff800000\nv_mov_b32 v11, v{vL16}\ns_mov_b32 s{sCnt}, 64\n{l1}:")
    A(f"ds_read_b128 {V(KF,4)}, v11\nv_add_u32 v11, {SLOT}, v11"); wlg(0)
    mf32(S0, V(KF, 4), V(q, 4), 0)
    for i in range(8): A(f"v_max3_f32 v10, v{S0+2*i}, v{S0+2*i+1}, v10")
    A(f"s_sub_u32 s{sCnt}, s{sCnt}, 1\ns_cmp_lg_u32 s{sCnt}, 0\ns_cbranch_scc1 {l1}")
    A("v_mov_b32 v11, v10\nv_permlane32_swap_b32 v10, v11\nv_max_f32 v10, v10, v11")
    for i in range(16): A(f"v_mov_b32 v{o+i}, 0")
    A(f"v_mov_b32 v11, v{vL16}\nv_mov_b32 v12, v{vVA}\ns_mov_b32 s{sCnt}, 64\n{l2}:")
    A(f"ds_read_b128 {V(KF,4)}, v11\nds_read_b128 {V(V0,4)}, v12\nds_read_b128 {V(V1,4)}, v12 offset:544")
    A(f"v_add_u32 v11, {SLOT}, v11\nv_add_u32 v12, {SLOT}, v12"); wlg(0)
    mf32(S0, V(KF, 4), V(q, 4), 0)
    for i in range(16): A(f"v_sub_f32 v{S0+i}, v{S0+i}, v10")
    for i in range(16): A(f"v_exp_f32 v{S0+i}, v{S0+i}")
    smf(o, V0, S0); smf(o, V1, S0 + 8)
    A(f"s_sub_u32 s{sCnt}, s{sCnt}, 1\ns_cmp_lg_u32 s{sCnt}, 0")
    A.fence()
    A(f"s_cbranch_scc1 {l2}")
A("s_branch L_fbdone")
tail_code.append(t.text()); A = A_main

for tl in range(2):
    b = 100 + 8 * tl
    A(f"""v_pk_add_f32 {V(b,2)}, {V(b,2)}, {V(b+2,2)}
    v_pk_add_f32 {V(b+4,2)}, {V(b+4,2)}, {V(b+6,2)}
    v_pk_add_f32 {V(b,2)}, {V(b,2)}, {V(b+4,2)}
    v_add_f32 v{b}, v{b}, v{b+1}
    v_mov_b32 v{b+1}, v{b}
    v_permlane32_swap_b32 v{b}, v{b+1}
    v_add_f32 v{b}, v{b}, v{b+1}
    v_and_b32 v{b+1}, 0xffff0000, v{b}
    v_sub_f32 v{b}, v{b}, v{b+1}
    v_cvt_pk_bf16_f32 v{CA+tl}, v{b+1}, v{b}""")
for i in range(8):
    A(f"v_lshlrev_b32 v{ACC+i}, 16, v{XR+i}\nv_and_b32 v{ACC+16+i}, 0xffff0000, v{XR+i}")
    A(f"v_mov_b32 v{ACC+8+i}, 0\nv_mov_b32 v{ACC+24+i}, 0")
A(f"""s_lshl_b32 s86, s{sW}, 14
s_lshr_b32 s95, s{sW}, 1
s_lshl_b32 s87, s95, 10
s_add_u32 s86, s86, s87
v_add_u32 v11, s86, v{vL16}
v_xor_b32 v12, 0x400, v11""")
for x in range(1, 4):
    A(f"s_xor_b32 s86, s{sW}, {x}\ns_mul_i32 s86, s86, 12288\ns_add_u32 s86, s86, {4096*(x-1)}\nv_add_u32 v{1+x}, s86, v{vL16}")
A(f"""s_mul_i32 s86, s{sW}, 12288
v_add_u32 v5, s86, v{vL16}
s_lshl_b32 s86, s95, 12
s_lshl_b32 s87, s{sM}, 1
s_and_b32 s88, s{sW}, 1
s_add_u32 s87, s87, s88
s_lshl_b32 s87, s87, 3
s_add_u32 s86, s86, s87
s_add_u32 s86, s86, {GS}
v_and_b32 v6, 31, v0
v_lshrrev_b32 v7, 5, v0
v_lshlrev_b32 v6, 7, v6
v_lshl_add_u32 v1, v7, 6, v6
v_add_u32 v1, {GS}, v1
v_lshl_add_u32 v6, v7, 2, v6
v_add_u32 v6, s86, v6""")
poll(f"buffer_load_dword v14, v{vPoll}, {srd(SWS)}, 0 offen sc1", 14)
ts()
for ks in range(8):
    for t_ in range(2): ld4(V(16 + 8 * ks + 4 * t_, 4), 11 + t_, SGA, 2048 * ks)
for ks in range(8):
    for t_ in range(2):
        wvm(15 - 2 * ks - t_)
        for ct in range(2):
            d = ACC + 32 * t_ + 16 * ct
            mf32(d, V(WOR + 8 * ks + 4 * ct, 4), V(16 + 8 * ks + 4 * t_, 4), 0 if (ks == 0 and t_ == 1) else d)


def reduce_():
    for x in (2, 3, 1):
        t_, hf = x >> 1, x & 1
        for i in range(4):
            r = ACC + 32 * t_ + 16 * (i >> 1) + 8 * hf + 4 * (i & 1)
            A(f"ds_write_b128 v{1+x}, {V(r,4)} offset:{1024*i}")
    wlg(0)
    A("s_barrier")
    for j in range(12): A(f"ds_read_b128 {V(16+4*j,4)}, v5 offset:{1024*j}")
    for x in range(3):
        for i in range(4):
            wlg(11 - 4 * x - i)
            r = ACC + 16 * (i >> 1) + 4 * (i & 1)
            for p in range(2):
                A(f"v_pk_add_f32 {V(r+2*p,2)}, {V(r+2*p,2)}, {V(16+16*x+4*i+2*p,2)}")


reduce_()
ts()
for i in range(8): A(f"v_cvt_pk_bf16_f32 v{XR+i}, v{ACC+i}, v{ACC+16+i}")
A(f"v_mov_b32 v7, s{sONE}")
for i in range(8):
    A(f"v_dot2_f32_bf16 v14, v{XR+i}, v7, {'0' if i == 0 else 'v14'}")
    A(f"v_dot2_f32_bf16 v15, v{XR+i}, v{XR+i}, {'0' if i == 0 else 'v15'}")
A("v_permlane32_swap_b32 v14, v15\nv_add_f32 v14, v14, v15")
gstores([f"buffer_store_dwordx4 {V(XR,4)}, v{vL16}, {srd(SGA)}, s{sHS} offen",
         f"buffer_store_dwordx4 {V(XR+4,4)}, v{vL16}, {srd(SGA)}, s{sHS} offen offset:2048",
         f"buffer_store_dword v14, v6, {srd(SGA)}, 0 offen"] + flag_lines(1))
ts()
A(f"""s_mul_i32 s86, s{sM}, 7
s_lshl_b32 s87, s{sW}, 1
s_add_u32 s86, s86, s87
s_lshl_b32 s86, s86, 12
s_add_u32 s86, s86, {GF}
v_add_u32 v6, s86, v{vL16}
s_add_u32 s86, s86, 4096
s_cmp_eq_u32 s{sW}, 3
s_cselect_b32 s86, 0x40000000, s86
v_add_u32 v7, s86, v{vL16}
s_mul_i32 s86, s{sW}, 57344
s_lshl_b32 s87, s95, 10
s_add_u32 s86, s86, s87
s_add_u32 s86, s86, {GF}
v_add_u32 v11, s86, v{vL16}
v_xor_b32 v12, 0x400, v11
v_add_u32 v15, {HB}, v{vL16}
s_cmp_eq_u32 s95, 0
s_cselect_b64 s[100:101], 0, -1
s_lshl_b32 s86, s{sW}, 14
s_add_u32 m0, s86, {HB}""")
poll(f"buffer_load_dword v14, v{vPoll}, {srd(SWS)}, 0 offen offset:128 sc1", 14)
ts()
for i in range(16):
    if i and i & 3 == 0: A("s_add_u32 m0, m0, 4096")
    A(f"buffer_load_dwordx4 v{vL16}, {srd(SGA)}, m0 offen offset:{(i&3)*1024} sc1 lds")
wvm(0)
A("s_barrier")
ts()

for i in range(8): ld4(V(48 + 4 * i, 4), 1, SGA, 4096 * (i >> 2) + 16 * (i & 3))
fill = []


def stats_ops(tt):
    b = 48 + 16 * tt
    L = []
    for a, c in ((0, 2), (4, 6), (8, 10), (12, 14), (0, 4), (8, 12), (0, 8)):
        L.append(f"v_pk_add_f32 {V(b+a,2)}, {V(b+a,2)}, {V(b+c,2)}")
    L += ["s_nop 0", f"v_permlane32_swap_b32 v{b}, v{b+1}", f"v_add_f32 v{b}, v{b}, v{b+1}", f"v_mov_b32 v{b+1}, v{b}",
          "s_nop 0", f"v_permlane32_swap_b32 v{b}, v{b+1}",
          f"v_mul_f32 v{b}, 0xbb000000, v{b}", f"v_mul_f32 v{b+2}, v{b}, v{b}",
          f"v_fma_f32 v{b+1}, v{b+1}, s94, -v{b+2}", f"v_max_f32 v{b+1}, 0, v{b+1}",
          f"v_add_f32 v{b+1}, 0x3727c5ac, v{b+1}", f"v_rsq_f32 v{b+1}, v{b+1}",
          f"v_and_b32 v{b+2}, 0xffff0000, v{b}", f"v_sub_f32 v{b+3}, v{b}, v{b+2}",
          f"v_cndmask_b32 v{b+2}, v{b+2}, v{b+3}, s[{sHI}:{sHI+1}]",
          f"v_cvt_pk_bf16_f32 v{b}, v{b+2}, v{b+2}"]
    return L


A("s_mov_b32 s94, 0x3b000000")
fill0 = stats_ops(0) + stats_ops(1) + [f"v_cndmask_b32 v{RS}, v49, v65, s[100:101]",
        "v_mov_b32 v56, v48", "v_mov_b32 v60, v64", f"v_mov_b32 v48, v{CA}", f"v_mov_b32 v52, v{CA+1}"]
fill0 += [f"v_mov_b32 v{r}, 0" for r in (49, 50, 51, 53, 54, 55, 57, 58, 59, 61, 62, 63)]


def post_ops(tt):
    L = []
    for tl in range(2):
        for p in range(8):
            r = ACC + 32 * tt + 16 * tl + 2 * p
            L.append(f"v_cvt_pk_bf16_f32 v{64+8*tl+p}, v{r}, v{r+1}")
        for p in range(8):
            L.append(f"v_pk_max_i16 v{64+8*tl+p}, v{64+8*tl+p}, 0")
    return L


def f_stores(tt):
    return [f"buffer_store_dwordx4 {V(64+8*tl+4*s,4)}, v{6+tl}, {srd(SGA)}, 0 offen offset:{2048*s+1024*tt}"
            for tl in range(2) for s in range(2)]


D = 6
hrd = lambda j: A(f"ds_read_b128 {V(16+4*(j&7),4)}, v15 offset:{2048*(j&31)+1024*(j>>5)}")
for j in range(D): hrd(j)
fill1 = post_ops(0)
for j in range(64):
    tt, ks = j >> 5, j & 31
    wlg(min(D - 1, 63 - j))
    for tl in range(2):
        d = ACC + 32 * tt + 16 * tl
        mf32(d, AR(8 * ks + 4 * tl, 4), V(16 + 4 * (j & 7), 4), 0 if ks == 0 else d)
        if tl == 0 and j + D < 64: hrd(j + D)
        if tt == 0:
            if tl == 1 and ks < 16: ld4(V(WOR + 4 * ks, 4), vW2, SWS, 1024 * (8 + ks))
            if ks == 16 and tl == 0: wvm(16)
            if ks >= 16:
                for _ in range(3):
                    if fill0: A(fill0.pop(0))
        else:
            if 1 <= ks < 17: ld4(AR(8 * (ks - 1) + 4 * tl, 4), vW2, SWS, 1024 * (24 + 2 * (ks - 1) + tl))
            if ks >= 4:
                for _ in range(2):
                    if fill1: A(fill1.pop(0))
            if ks == 17 and tl == 1:
                assert not fill1
                gstores(f_stores(0))
    if ks == 31:
        assert not fill0
        for tl in range(2):
            d = ACC + 32 * tt + 16 * tl
            mf32(d, V(48 + 4 * tl, 4), V(56 + 4 * tt, 4), d)
for l in post_ops(1): A(l)
gstores(f_stores(1) + flag_lines(2))
ts()
poll(f"buffer_load_dword v14, v{vPoll}, {srd(SWS)}, 0 offen offset:256 sc1", 14)
ts()

def breg(bi):
    if bi < 32: return AR(128 + 4 * bi, 4)
    if bi < 48: return V(16 + 4 * (bi - 32), 4)
    return AR(128 + 4 * (bi - 48), 4)
def areg(fi):
    if fi < 8: return V(W2A + 4 * fi, 4)
    if fi < 24: return V(WOR + 4 * (fi - 8), 4)
    return AR(4 * (fi - 24), 4)
fld = lambda bi: ld4(breg(bi), 11 + (bi & 1), SGA, 2048 * (bi >> 1))
for bi in range(48): fld(bi)
issued = 48
fill2 = []
for i in range(8):
    fill2 += [f"v_lshlrev_b32 v{W2A+i}, 16, v{XR+i}", f"v_and_b32 v{W2A+8+i}, 0xffff0000, v{XR+i}"]
for ks in range(28):
    for t_ in range(2):
        wvm(issued - (2 * ks + t_ + 1))
        for ct in range(2):
            d = ACC + 32 * t_ + 16 * ct
            mf32(d, areg(2 * ks + ct), breg(2 * ks + t_), 0 if ks == 0 else d)
            if ks >= 8 and fill2: A(fill2.pop(0))
    if 1 <= ks <= 4:
        fld(issued); fld(issued + 1); issued += 2
reduce_()
ts()
for i in range(8):
    A(f"v_fma_f32 v{ACC+i}, v{ACC+i}, v{RS}, v{W2A+i}")
    A(f"v_fma_f32 v{ACC+16+i}, v{ACC+16+i}, v{RS}, v{W2A+8+i}")
    A(f"v_cvt_pk_bf16_f32 v{XR+i}, v{ACC+i}, v{ACC+16+i}")
    if i & 3 == 3:
        A(f"buffer_store_dwordx4 {V(XR+i-3,4)}, v{vXO}, {srd(SOUT)}, 0 offen offset:{32*(i>>2)}")
A(f"""s_or_b32 s86, s2, s{sW}
s_cmp_eq_u32 s86, 0
s_cbranch_scc0 L_noepoch
s_mov_b64 exec, 1
buffer_store_dword v10, off, {srd(SWS)}, 0 sc1
s_mov_b64 exec, -1
L_noepoch:""")
if TS:
    wvm(0); ts()
    A(f"""s_lshl_b32 s86, s2, 2
    s_add_u32 s86, s86, s{sW}
    s_lshl_b32 s86, s86, 8
    s_add_u32 s86, s86, {TSA}
    v_lshlrev_b32 v11, 2, v0
    buffer_store_dword v{vTS}, v11, {srd(SWS)}, s86 offen""")
A("s_endpgm")

ref = open(f"cdna_kernels/{NAME}.s.ref").read().split("\n")
head = [l for l in ref if l.startswith(";") and "@launch" not in l][:12]
out = "\n".join(head) + f"\n; @launch grid=(256,1,1) block=(256,1,1) lds={LDSSZ}\n"
out += f""".amdgcn_target "amdgcn-amd-amdhsa--gfx950"
.text
.globl {NAME}_kernel
.p2align 8
.type {NAME}_kernel,@function
{NAME}_kernel:
"""
out += A.text() + "\n".join(tail_code) + "\nL_end:\n    s_endpgm\n"
out += f""".section .rodata,"a"
.p2align 6
.amdhsa_kernel {NAME}_kernel
  .amdhsa_next_free_vgpr 512
  .amdhsa_next_free_sgpr 102
  .amdhsa_accum_offset 256
  .amdhsa_group_segment_fixed_size 0
  .amdhsa_kernarg_size 88
  .amdhsa_user_sgpr_count 2
  .amdhsa_user_sgpr_kernarg_segment_ptr 1
  .amdhsa_system_sgpr_workgroup_id_x 1
  .amdhsa_float_denorm_mode_32 3
.end_amdhsa_kernel
"""
open(sys.argv[1], "w").write(out)
print("instructions:", sum(1 for i in A.ins if i.kind != "meta"), "auto nop states:", A.nops, "ts:", nts[0])
```

```python
import sys
from asmlib import *

NAME = "sequential_preLN__grouped_kv_mqa__dense_activation_relu__prompt"
OPT = dict(ts=0, force_fb=0, force_sc1=0, nostash=0, notouch=1, tsa=0, dbgwg=77, fakex=0, ftouch=1)
for a in sys.argv[2:]:
    k, v = a.split("="); OPT[k] = int(v)
TS = OPT["ts"]

KVF, WGF, XF, CS, KV = 0x1000, 0x2000, 0x4000, 0x8000, 0x28000
WO, W1, W2, GA, GSTR = 0x50000, 0xD0000, 0x290000, 0x480000, 0x60000
GH, GF, GS = 0x10000, 0x20000, 0x58000
TSA, WSSZ = 0x1100000, 0x1200000
QB, WKVS, LDSSZ, HB = 135168, 143360, 159744, 0x10000
SLOT = 2112
SPIN = 40000
SX, SWQ, SWKV, SPS, SWS, SKV, SOUT, SGA = 4, 8, 12, 16, 20, 24, 28, 32
sW, sM, sG, sTAG = 36, 37, 38, 39
sK = 64
sQd, sCd, sQC, sIsW1, sFV, sSame, sCnt = 80, 81, 82, 83, 84, 85, 96
sXF, sHS, sHI = 90, 91, 92
sONE = 97
vL, vIDX, vKA, vVA, vL16, vL16b, vTS = 0, 1, 2, 5, 8, 9, 13
Q0, Q1, KF, V0, V1, S0, S1, O0, O1 = 16, 20, 24, 28, 32, 36, 52, 68, 84
XR, CA, RS, vXO, WOR, W2A = 144, 152, 154, 155, 160, 224
vWo, vW2, vCS, vPoll = 156, 157, 158, 159
ACC = 80

A = Asm()
tail_code = []
srd = lambda b: S(b, 4)
nts = [0]


def ts():
    if TS:
        A(f"s_memtime s[98:99]\ns_waitcnt lgkmcnt(0)\nv_writelane_b32 v{vTS}, s98, {nts[0]}")
        nts[0] += 1


def mksrd(b, lo, hi, size):
    A(f"s_mov_b32 s{b}, {lo}\ns_mov_b32 s{b+1}, {hi}\ns_mov_b32 s{b+2}, {size}\ns_mov_b32 s{b+3}, 0x20000")


def addsrd(b, lo, hi, off, size):
    A(f"s_add_u32 s{b}, {lo}, {off}\ns_addc_u32 s{b+1}, {hi}, 0\ns_mov_b32 s{b+2}, {size}\ns_mov_b32 s{b+3}, 0x20000")


def mf16(d, a, b, c):
    A(f"v_mfma_f32_16x16x32_bf16 {V(d,4)}, {V(a,4)}, {V(b,4)}, {c if c == 0 else V(c,4)}")


def mf32(d, a, b, c):
    A(f"v_mfma_f32_32x32x16_bf16 {V(d,16)}, {a}, {b}, {c if c == 0 else V(c,16)}")


def wvm(n): A(f"s_waitcnt vmcnt({n})")
def wlg(n): A(f"s_waitcnt lgkmcnt({n})")


def ko(off):
    return f"s{sK + (off >> 12)}", off & 4095


def ld4(dst, addr, s, off, mod=" sc1"):
    so, im = ko(off)
    A(f"buffer_load_dwordx4 {dst}, v{addr}, {srd(s)}, {so} offen offset:{im}{mod}")


uid = [0]
def lab(p):
    uid[0] += 1
    return f"L_{p}{uid[0]}"


def poll(load, reg):
    L, D = lab("poll"), lab("pdone")
    A(f"s_mov_b32 s{sCnt}, {SPIN}")
    A.fence()
    A(f"""{L}:
    {load}
    s_sub_u32 s{sCnt}, s{sCnt}, 1
    s_cbranch_scc1 {D}
    s_waitcnt vmcnt(0)
    v_cmp_ne_u32 vcc, s{sTAG}, v{reg}
    s_nop 0
    s_cmp_eq_u64 vcc, 0
    s_cbranch_scc0 {L}
    {D}:""")


def gstores(lines):
    alt, join = lab("alt"), lab("join")
    A(f"s_cmp_eq_u32 s{sSame}, 0")
    for l in lines:
        c = Ins(l)
        d = 0; pad = 0
        for p in reversed(A.ins):
            if d >= 14: break
            pad = max(pad, need(p, c) - d); d += p.states
        if pad > 0: A(f"s_nop {pad-1}")
    A(f"s_cbranch_scc1 {alt}")
    for l in lines: A(l)
    A(f"{join}:")
    t = [f"{alt}:"] + [l + (" sc1" if l.startswith("buffer_store") else "") for l in lines] + [f"s_branch {join}"]
    tail_code.append("\n".join(t))


def flag_lines(k):
    return ["s_waitcnt vmcnt(0)", "s_mov_b64 exec, 1",
            f"buffer_store_dword v10, off, {srd(SWS)}, s{sXF} offset:{128*k}", "s_mov_b64 exec, -1"]


A(f"""s_cmp_ge_u32 s2, 0x100
s_cbranch_scc1 L_end
s_load_dwordx16 s[40:55], s[0:1], 0
s_load_dwordx4 s[56:59], s[0:1], 64
s_load_dwordx2 s[60:61], s[0:1], 80
s_getpc_b64 s[62:63]
L_pc:
v_lshrrev_b32 v10, 6, v0
v_and_b32 v0, 63, v0
s_lshr_b32 s86, s2, 3
v_readfirstlane_b32 s{sW}, v10
s_and_b32 s3, s2, 7
s_and_b32 s{sM}, s86, 7
s_lshr_b32 s87, s86, 3
s_lshl_b32 s{sG}, s3, 2
s_add_u32 s{sG}, s{sG}, s87
s_getreg_b32 s{sFV}, hwreg(HW_REG_XCC_ID, 0, 4)
s_lshl_b32 s86, s86, 2
s_add_u32 s86, s86, s{sW}
s_lshl_b32 s86, s86, 9
v_and_b32 v10, 3, v0
v_lshl_add_u32 v10, v10, 7, s86
s_mov_b32 s87, L_end-L_pc
v_min_u32 v10, s87, v10
global_load_dword v14, v10, s[62:63]
v_lshlrev_b32 v{vL16}, 4, v0
v_and_b32 v192, 15, v0
v_lshrrev_b32 v193, 4, v0
s_mov_b32 s{sONE}, 0x3f803f80""")
if TS:
    A(f"v_mov_b32 v{vTS}, 0\ns_memrealtime s[98:99]\ns_waitcnt lgkmcnt(0)\nv_writelane_b32 v{vTS}, s98, 61")
ts()
for i in range(4): A(f"v_mov_b32 v{56+i}, s{sONE}")
A(f"""s_lshl_b32 s86, s{sG}, 6
s_lshl_b32 s87, s{sW}, 4
s_add_u32 s88, s86, s87
v_add_u32 v194, s88, v192
v_lshlrev_b32 v194, 10, v194
v_lshl_add_u32 v194, v193, 4, v194
s_lshl_b32 s88, s{sM}, 3
s_add_u32 s88, s88, s86
s_lshl_b32 s88, s88, 3
s_add_u32 s88, s88, s87
v_add_u32 v195, s88, v192
v_lshlrev_b32 v195, 7, v195
s_and_b32 s88, s{sG}, 3
s_lshl_b32 s88, s88, 2
s_add_u32 s88, s88, s{sW}
s_lshl_b32 s88, s88, 15
s_lshl_b32 s89, s{sM}, 7
s_add_u32 s88, s88, s89
v_and_b32 v196, 31, v0
v_lshl_add_u32 v196, v196, 10, s88
s_waitcnt lgkmcnt(0)""")
mksrd(SWS, "s60", "s61", WSSZ)
mksrd(SX, "s40", "s41", 2097152)
A(f"buffer_load_dword v15, off, {srd(SWS)}, 0 sc1")
if OPT['ftouch']: A(f"buffer_load_dword v14, v195, {srd(SX)}, 0 offen")
mksrd(SWQ, "s42", "s43", 524288)
if OPT['ftouch']: A(f"buffer_load_dword v14, v196, {srd(SWQ)}, 0 offen")
if OPT['fakex']:
    A(f"""s_lshl_b32 s86, s{sG}, 6
    s_lshl_b32 s87, s{sW}, 4
    s_add_u32 s88, s86, s87
    v_lshrrev_b32 v194, 3, v0
    v_add_u32 v194, s88, v194
    v_lshlrev_b32 v194, 10, v194
    v_and_b32 v195, 7, v0
    v_lshl_add_u32 v194, v195, 4, v194
    v_add_u32 v195, 0x2000, v194""")


def x_loads():
    for ks in range(16):
        if OPT['fakex']: A(f"buffer_load_dwordx4 {V(64+4*ks,4)}, v{194+(ks&1)}, {srd(SX)}, 0 offen offset:{128*(ks>>1)}")
        else: A(f"buffer_load_dwordx4 {V(64+4*ks,4)}, v194, {srd(SX)}, 0 offen offset:{64*ks}")


def wq_setup():
    A(f"""v_lshrrev_b32 v197, 3, v0
    v_bfe_u32 v198, v0, 4, 1
    v_bfe_u32 v199, v0, 1, 2
    v_xor_b32 v198, v198, v199
    v_lshlrev_b32 v198, 5, v198
    v_and_b32 v199, 1, v0
    v_lshl_add_u32 v198, v199, 4, v198
    v_lshl_add_u32 v197, v197, 10, v198
    s_lshl_b32 s86, s{sW}, 17
    s_add_u32 s86, s86, s89
    v_add_u32 v197, s86, v197
    v_xor_b32 v198, 64, v197""")


def wq_dma():
    A(f"s_lshl_b32 m0, s{sW}, 14\ns_mov_b32 s86, 0")
    for i in range(16):
        if i and i % 4 == 0:
            A("s_add_u32 m0, m0, 4096\ns_add_u32 s86, s86, 4096")
        A(f"buffer_load_dwordx4 v{197+(i&1)}, {srd(SWQ)}, s86 offen offset:{(i&3)*1024} lds")
        if i < 15: A("s_add_u32 s86, s86, 7168")


def pre_setup():
    l1, l2, lj = lab("u1"), lab("u2"), lab("uj")
    A(f"""s_lshl_b32 s86, s2, 2
    s_add_u32 s86, s86, s{sW}
    s_mov_b32 s{sIsW1}, 0
    s_mov_b32 s{SPS+3}, 0x20000
    s_cmp_ge_u32 s86, 576
    s_cbranch_scc1 {l2}
    s_cmp_ge_u32 s86, 128
    s_cbranch_scc1 {l1}
    s_mov_b32 s{SPS}, s48
    s_mov_b32 s{SPS+1}, s49
    s_mov_b32 s{SPS+2}, 524288
    s_and_b32 s87, s86, 7
    s_lshr_b32 s88, s86, 3
    s_lshl_b32 s94, s88, 15
    s_lshl_b32 s95, s87, 16
    s_lshl_b32 s88, s88, 12
    s_add_u32 s95, s95, s88
    s_add_u32 s95, s95, {WO}
    s_mov_b32 s3, 4096
    s_mov_b32 s72, 16384
    s_mov_b32 s65, 1024
    s_mov_b32 s68, 8192
    s_mov_b32 s{sQd}, 2048
    s_mov_b32 s{sCd}, 1024
    s_branch {lj}
    {l1}:
    s_mov_b32 s{SPS}, s52
    s_mov_b32 s{SPS+1}, s53
    s_mov_b32 s{SPS+2}, 1835008
    s_sub_u32 s86, s86, 128
    s_mul_i32 s88, s86, 2341
    s_lshr_b32 s88, s88, 16
    s_mul_i32 s87, s88, 28
    s_sub_u32 s87, s86, s87
    s_mul_i32 s94, s88, 114688
    s_lshl_b32 s95, s87, 16
    s_lshl_b32 s86, s88, 11
    s_add_u32 s95, s95, s86
    s_add_u32 s95, s95, {W1}
    s_lshl_b32 s{sIsW1}, s87, 12
    s_lshl_b32 s86, s88, 2
    s_add_u32 s{sIsW1}, s{sIsW1}, s86
    s_add_u32 s{sIsW1}, s{sIsW1}, {CS}
    s_mov_b32 s3, 28672
    s_mov_b32 s72, 57344
    s_mov_b32 s65, 3584
    s_mov_b32 s68, 14336
    s_mov_b32 s{sQd}, 1024
    s_mov_b32 s{sCd}, 32768
    s_branch {lj}
    {l2}:
    s_mov_b32 s{SPS}, s54
    s_mov_b32 s{SPS+1}, s55
    s_mov_b32 s{SPS+2}, 1835008
    s_sub_u32 s86, s86, 576
    s_and_b32 s87, s86, 7
    s_lshr_b32 s88, s86, 3
    s_lshr_b32 s94, s88, 1
    s_lshl_b32 s94, s94, 6
    s_and_b32 s86, s88, 1
    s_add_u32 s94, s94, s86
    s_lshl_b32 s94, s94, 10
    s_mul_i32 s95, s87, 229376
    s_lshl_b32 s88, s88, 12
    s_add_u32 s95, s95, s88
    s_add_u32 s95, s95, {W2}
    s_mov_b32 s3, 8192
    s_mov_b32 s72, 32768
    s_mov_b32 s65, 2048
    s_mov_b32 s68, 16384
    s_mov_b32 s{sQd}, 2048
    s_mov_b32 s{sCd}, 1024
    {lj}:
    s_lshl_b32 s87, s87, 7
    s_add_u32 s94, s94, s87
    s_add_u32 s{sQC}, s{sQd}, s{sCd}
    s_mov_b32 s64, 0
    s_lshl_b32 s66, s65, 1
    s_add_u32 s67, s66, s65
    s_add_u32 s69, s68, s65
    s_add_u32 s70, s68, s66
    s_add_u32 s71, s68, s67""")
    for j in range(1, 8): A(f"s_add_u32 s{72+j}, s72, s{64+j}")
    A(f"""v_lshrrev_b32 v200, 5, v0
    v_mul_u32_u24 v200, s3, v200
    v_and_b32 v201, 31, v0
    v_lshl_add_u32 v200, v201, 2, v200
    v_add_u32 v200, s94, v200
    v_add_u32 v201, s95, v{vL16}
    v_lshlrev_b32 v202, 6, v0""")


def pre_loads():
    for i in range(16):
        A(f"buffer_load_dword v{128+i}, v200, {srd(SPS)}, s{64+i} offen")


def pre_convert():
    A("s_mov_b32 s86, 0x05040100\ns_mov_b32 s87, 0x07060302")
    wvm(0)
    so = ["0", f"s{sCd}", f"s{sQd}", f"s{sQC}"]
    for q in range(2):
        for ct in range(2):
            d = 144 + (q * 2 + ct) * 4
            for p in range(4):
                A(f"v_perm_b32 v{d+p}, v{128+8*q+2*p+1}, v{128+8*q+2*p}, s{86+ct}")
            A(f"buffer_store_dwordx4 {V(d,4)}, v201, {srd(SWS)}, {so[q*2+ct]} offen sc1")
    L = lab("nocs")
    A(f"s_cmp_eq_u32 s{sIsW1}, 0\ns_cbranch_scc1 {L}")
    for i in range(8):
        for ct in range(2):
            src = 144 + ((i >> 2) * 2 + ct) * 4 + (i & 3)
            A(f"v_dot2_f32_bf16 v{128+ct}, v{src}, v56, {'0' if i == 0 else V(128+ct)}")
    A(f"""v_permlane32_swap_b32 v128, v129
    v_add_f32 v128, v128, v129
    buffer_store_dword v128, v202, {srd(SWS)}, s{sIsW1} offen sc1""")
    A.fence()
    A(f"{L}:")


def stat_step(ks, n0, n1):
    for j in range(n0, n1):
        acc = 52 + (j & 1)
        first = ks == 0 and j < 2
        r = 64 + 4 * ks + j
        A(f"v_dot2_f32_bf16 v{acc}, v{r}, v{r}, {'0' if first else V(acc)}")


def stat_final():
    A(f"""v_add_f32 v52, v52, v53
    v_mov_b32 v53, v52
    v_permlane32_swap_b32 v52, v53
    v_add_f32 v52, v52, v53
    v_mov_b32 v53, v52
    v_permlane16_swap_b32 v52, v53
    v_add_f32 v52, v52, v53
    v_mul_f32 v53, 0x3b000000, v48
    v_mul_f32 v54, v53, v53
    s_mov_b32 s86, 0x3b000000
    v_fma_f32 v52, v52, s86, -v54
    v_max_f32 v52, 0, v52
    v_add_f32 v52, 0x3727c5ac, v52
    v_rsq_f32 v54, v52""")


def get_tag():
    A(f"""v_readfirstlane_b32 s{sTAG}, v15
    s_add_u32 s{sTAG}, s{sTAG}, 0x9e3779b0
    s_and_b32 s{sTAG}, s{sTAG}, -16
    s_or_b32 s{sFV}, s{sFV}, s{sTAG}""")


A(f"s_cmp_lt_u32 s{sM}, 2\ns_cbranch_scc1 L_kv")
x_loads()
wq_setup()
wq_dma()
pre_setup()
pre_loads()
addsrd(SKV, "s60", "s61", KV, 64 * SLOT)
for ks in range(16):
    wvm(47 - ks)
    if ks == 0: get_tag()
    mf16(48, 56, 64 + 4 * ks, 0 if ks == 0 else 48)
    stat_step(ks, 0, 4)
stat_final()
if OPT['tsa'] == 2: ts(); nts[0] -= 1
wvm(16)
A("s_branch L_q")

A("L_kv:")
A(f"""s_cmp_eq_u32 s{sM}, 0
s_cselect_b32 s{SWKV}, s44, s46
s_cselect_b32 s{SWKV+1}, s45, s47
s_mov_b32 s{SWKV+2}, 16384
s_mov_b32 s{SWKV+3}, 0x20000
v_and_b32 v203, 16, v0
v_lshlrev_b32 v203, 3, v203
v_xor_b32 v203, v203, v{vL16}
s_lshl_b32 s86, s{sW}, 12
s_add_u32 m0, s86, {WKVS}""")
for i in range(4):
    A(f"buffer_load_dwordx4 v203, {srd(SWKV)}, s86 offen offset:{i*1024} lds")
x_loads()
addsrd(SKV, "s60", "s61", KV, 64 * SLOT)
wq_setup()
pre_setup()
A(f"""v_and_b32 v204, 1, v193
v_lshlrev_b32 v204, 7, v204
v_lshl_add_u32 v204, v192, 3, v204
v_lshl_add_u32 v203, v193, 8, v204
v_add_u32 v203, {WKVS}, v203
v_xor_b32 v204, 0x80, v203
s_lshl_b32 s86, s{sG}, 1
s_lshr_b32 s87, s{sW}, 1
s_add_u32 s86, s86, s87
s_mul_i32 s94, s86, {SLOT}
s_and_b32 s95, s{sW}, 1
v_and_b32 v205, 1, v193
v_lshlrev_b32 v205, 3, v205
v_lshrrev_b32 v206, 1, v193""")
wvm(16)
A("s_barrier")
get_tag()


def kv_body(isv_):
    D = 6
    def rd(ks):
        A(f"ds_read_b64_tr_b16 {V(128+4*ks,2)}, v203 offset:{1024*ks}")
        A(f"ds_read_b64_tr_b16 {V(130+4*ks,2)}, v204 offset:{1024*ks}")
    for ks in range(D): rd(ks)
    for ks in range(16):
        w, x = 128 + 4 * ks, 64 + 4 * ks
        A(f"s_waitcnt vmcnt({15-ks}) lgkmcnt({2*min(D-1, 15-ks)})")
        c = lambda r: 0 if ks == 0 else r
        if isv_: mf16(16, x, w, c(16))
        else: mf16(16, w, x, c(16))
        stat_step(ks, 0, 2)
        if isv_: mf16(32, 56, w, c(32))
        else: mf16(32, w, 56, c(32))
        stat_step(ks, 2, 4)
        mf16(48, 56, x, c(48))
        if ks + D < 16: rd(ks + D)
    stat_final()


A(f"s_cmp_eq_u32 s{sM}, 0\ns_cbranch_scc0 L_v")
kv_body(False)
A(f"""v_lshl_add_u32 v206, v206, 5, v192
s_lshl_b32 s95, s95, 8
s_add_u32 s94, s94, s95
v_lshl_add_u32 v205, v206, 4, v205""")
for r in range(4): A(f"v_fma_f32 v{16+r}, -v53, v{32+r}, v{16+r}")
for r in range(4): A(f"v_mul_f32 v{16+r}, v{16+r}, v54")
A(f"""v_cvt_pk_bf16_f32 v16, v16, v17
v_cvt_pk_bf16_f32 v17, v18, v19
buffer_store_dwordx2 v[16:17], v205, {srd(SKV)}, s94 offen sc1
s_branch L_kvdone
L_v:""")
kv_body(True)
A("v_lshlrev_b32 v207, 4, v193")
for r in range(4):
    A(f"ds_bpermute_b32 v{20+r}, v207, v53 offset:{4*r}\nds_bpermute_b32 v{24+r}, v207, v54 offset:{4*r}")
A(f"""s_mul_i32 s95, s95, 544
s_add_u32 s94, s94, s95
s_add_u32 s94, s94, 1024
v_mul_u32_u24 v206, 272, v206
v_add_u32 v206, v206, v205
v_lshl_add_u32 v205, v192, 4, v206
s_mov_b64 exec, 0x0001000100010001
buffer_store_dwordx2 v[56:57], v206, {srd(SKV)}, s94 offen offset:256 sc1
s_mov_b64 exec, -1""".replace("s_mov_b64 exec, 0x0001000100010001",
                              "s_mov_b32 exec_lo, 0x00010001\ns_mov_b32 exec_hi, 0x00010001"))
wlg(0)
for r in range(4): A(f"v_fma_f32 v{16+r}, -v{20+r}, v32, v{16+r}")
for r in range(4): A(f"v_mul_f32 v{16+r}, v{16+r}, v{24+r}")
A(f"""v_cvt_pk_bf16_f32 v16, v16, v17
v_cvt_pk_bf16_f32 v17, v18, v19
buffer_store_dwordx2 v[16:17], v205, {srd(SKV)}, s94 offen sc1
L_kvdone:""")
if OPT['tsa'] == 2: ts()
wq_dma()
pre_loads()
A(f"""s_lshl_b32 s86, s{sG}, 5
s_lshl_b32 s87, s{sM}, 2
s_add_u32 s86, s86, s87
s_add_u32 s86, s86, s{sW}
s_lshl_b32 s86, s86, 2
s_add_u32 s86, s86, {KVF}
v_mov_b32 v10, s{sTAG}
s_waitcnt vmcnt(32)
s_mov_b64 exec, 1
buffer_store_dword v10, off, {srd(SWS)}, s86 sc1
s_mov_b64 exec, -1""")
wvm(17)

A("L_q:")
ts()
A(f"""v_bfe_u32 v203, v0, 2, 2
v_lshl_add_u32 v203, v193, 3, v203
v_lshlrev_b32 v203, 7, v203
v_and_b32 v204, 3, v0
v_lshl_add_u32 v203, v204, 3, v203
v_bfe_u32 v204, v0, 3, 2
v_lshl_add_u32 v208, v204, 5, v203
v_xor_b32 v209, 32, v208
v_xor_b32 v210, 64, v208
v_xor_b32 v211, 0x60, v208
s_barrier""")
D = 7
def qrd(f):
    ks, hh = f >> 2, f & 3
    r = 160 + 4 * (f & 7)
    A(f"ds_read_b64_tr_b16 {V(r,2)}, v{208+hh} offset:{4096*ks}")
    A(f"ds_read_b64_tr_b16 {V(r+2,2)}, v{208+hh} offset:{4096*ks+512}")
for f in range(D): qrd(f)
for f in range(64):
    ks, hh = f >> 2, f & 3
    r = 160 + 4 * (f & 7)
    wlg(2 * min(D - 1, 63 - f))
    mf16(16 + 4 * hh, r, 64 + 4 * ks, 0 if ks == 0 else 16 + 4 * hh)
    mf16(32 + 4 * hh, r, 56, 0 if ks == 0 else 32 + 4 * hh)
    if f + D < 64: qrd(f + D)
    if f == 31:
        if OPT['tsa'] == 2: ts()
        pre_convert()
        if OPT['tsa'] == 2: ts()
A(f"""v_lshrrev_b32 v206, 1, v193
v_lshl_add_u32 v206, v206, 5, v192
v_and_b32 v205, 1, v193
v_lshlrev_b32 v205, 3, v205
v_lshl_add_u32 v205, v206, 4, v205
s_lshr_b32 s86, s{sW}, 1
s_lshl_b32 s86, s86, 10
s_and_b32 s87, s{sW}, 1
s_lshl_b32 s87, s87, 8
s_add_u32 s86, s86, s87
s_add_u32 s86, s86, {QB}
v_add_u32 v205, s86, v205
v_mul_f32 v55, 0x3eb8aa3b, v54""")
for hh in range(4):
    b = 16 + 4 * hh
    for r in range(4): A(f"v_fma_f32 v{b+r}, -v53, v{b+16+r}, v{b+r}")
    for r in range(4): A(f"v_mul_f32 v{b+r}, v{b+r}, v55")
    A(f"""v_cvt_pk_bf16_f32 v{b}, v{b}, v{b+1}
    v_cvt_pk_bf16_f32 v{b+1}, v{b+2}, v{b+3}
    ds_write_b64 v205, {V(b,2)} offset:{2048*hh}""")
A(f"""v_lshrrev_b32 v11, 3, v0
v_lshlrev_b32 v11, 7, v11
v_and_b32 v12, 7, v0
v_lshl_add_u32 v11, v12, 2, v11
s_lshl_b32 s86, s{sW}, 10
s_add_u32 s86, s86, {KVF}
v_add_u32 v11, s86, v11
s_lshl_b32 s87, s{sG}, 3
s_add_u32 s87, s87, s{sM}
s_lshl_b32 s87, s87, 2
s_add_u32 s87, s87, {WGF}
v_mov_b32 v10, s{sFV}
""")
if OPT['tsa'] == 2: ts()
A("s_waitcnt vmcnt(0) lgkmcnt(0)\ns_barrier")
ts()
A(f"""s_cmp_eq_u32 s{sW}, 0
s_cbranch_scc0 L_noflag
s_mov_b64 exec, 1
buffer_store_dword v10, off, {srd(SWS)}, s87 sc1
s_mov_b64 exec, -1
L_noflag:""")
poll(f"buffer_load_dword v14, v11, {srd(SWS)}, 0 offen sc1", 14)
ts()


def kvdma(i):
    if i & 3 == 0 and i:
        A("s_add_u32 m0, m0, 4096")
    A(f"buffer_load_dwordx4 v{vL16}, {srd(SKV)}, m0 offen offset:{(i&3)*1024} sc1 lds")


A(f"s_mul_i32 m0, s{sW}, 33792")
for i in range(17): kvdma(i)
A(f"""s_lshl_b32 s86, s{sW}, 11
s_add_u32 s86, s86, {QB}
v_add_u32 v11, s86, v{vL16}
ds_read_b128 {V(Q0,4)}, v11
ds_read_b128 {V(Q1,4)}, v11 offset:1024
v_mov_b32 v{vIDX}, 0xdddddddd
v_mov_b32 v{vKA}, v{vL16}
v_add_u32 v{vKA+1}, {31*SLOT}, v{vL16}
v_add_u32 v{vKA+2}, {62*SLOT}, v{vL16}
v_and_b32 v10, 31, v0
v_min_u32 v11, 16, v10
v_lshlrev_b32 v11, 4, v11
v_lshrrev_b32 v12, 5, v0
v_mul_u32_u24 v14, 272, v12
s_mov_b32 s86, 1024
v_add3_u32 v{vVA}, v11, v14, s86
v_add_u32 v{vVA+1}, {31*SLOT}, v{vVA}
v_add_u32 v{vVA+2}, {62*SLOT}, v{vVA}
v_add_u32 v{vL16b}, 0x8000, v{vL16}""")
for i in range(16): A(f"s_mov_b32 s{sK+i}, {4096*i}")
for i in range(32): A(f"v_mov_b32 v{O0+i}, 0")
mksrd(SOUT, "s56", "s57", 2097152)
A(f"s_mul_i32 s86, s{sG}, {GSTR}\ns_add_u32 s86, s86, {GA}")
addsrd(SGA, "s60", "s61", "s86", GSTR)
A(f"""s_mul_i32 s86, s{sM}, 7
s_lshl_b32 s87, s{sW}, 1
s_add_u32 s88, s86, s87
s_lshl_b32 s86, s88, 15
s_add_u32 s86, s86, {W1}
s_add_u32 s{SWQ}, s60, s86
s_addc_u32 s{SWQ+1}, s61, 0
s_mov_b32 s86, 0x8000
s_cmp_eq_u32 s{sW}, 3
s_cselect_b32 s{SWQ+2}, s86, 0x10000
s_lshl_b32 s88, s88, 11
s_add_u32 s88, s88, {CS}
v_lshlrev_b32 v{vCS}, 6, v10
v_lshl_add_u32 v{vCS}, v12, 5, v{vCS}
v_add_u32 v{vCS}, s88, v{vCS}
s_and_b32 s94, s{sW}, 1
s_lshr_b32 s95, s{sW}, 1
s_lshl_b32 s86, s94, 8
v_xor_b32 v11, s86, v{vL16}
s_lshl_b32 s86, s{sM}, 2
s_add_u32 s86, s86, s{sW}
s_lshl_b32 s87, s86, 14
s_add_u32 s87, s87, {WO}
v_add_u32 v{vWo}, s87, v11
s_mul_i32 s87, s86, 57344
s_add_u32 s87, s87, {W2}
v_add_u32 v{vW2}, s87, v11
s_lshl_b32 s87, s{sG}, 9
s_add_u32 s87, s87, {XF}
s_lshl_b32 s86, s86, 2
s_add_u32 s{sXF}, s87, s86
s_lshl_b32 s86, s{sW}, 5
s_add_u32 s87, s87, s86
v_and_b32 v11, 7, v0
v_lshl_add_u32 v{vPoll}, v11, 2, s87
s_lshl_b32 s86, s{sG}, 1
s_add_u32 s86, s86, s95
s_lshl_b32 s86, s86, 15
s_lshl_b32 s87, s{sM}, 1
s_add_u32 s87, s87, s94
s_lshl_b32 s88, s87, 6
s_add_u32 s86, s86, s88
v_lshl_add_u32 v{vXO}, v10, 10, s86
v_lshl_add_u32 v{vXO}, v12, 4, v{vXO}
s_lshl_b32 s87, s87, 12
s_lshl_b32 s86, s95, 10
s_add_u32 s87, s87, s86
s_add_u32 s{sHS}, s87, {GH}
s_mov_b32 s{sHI}, 0
s_mov_b32 s{sHI+1}, -1""")
A(f"""s_and_b32 s86, s{sG}, 3
s_lshl_b32 s86, s86, 2
s_add_u32 s86, s86, s{sW}
s_lshl_b32 s87, s86, 12
s_lshl_b32 s88, s{sM}, 16
s_add_u32 s87, s87, s88
s_add_u32 s87, s87, {WO}
v_lshl_add_u32 v116, v10, 7, s87
s_mul_i32 s86, s86, 14336
s_mul_i32 s88, s{sM}, 229376
s_add_u32 s86, s86, s88
s_add_u32 s86, s86, {W1}
v_lshl_add_u32 v117, v0, 7, s86
v_min_u32 v118, 47, v0
s_add_u32 s86, s86, 8192
v_lshl_add_u32 v118, v118, 7, s86
v_add_u32 v119, {W2-W1}, v117
v_add_u32 v120, {W2-W1}, v118
v_add_u32 v121, {WGF}, v{vL16}""")
wvm(12)
A("s_barrier")
ts()

order = []
for lo, hi in ((0, 2), (2, 8), (8, 16)):
    for ww in range(4): order += [16 * ww + i for i in range(lo, hi)]


def kvaddr(slot):
    b = slot // 31
    return b, (slot - 31 * b) * SLOT


def rdK(n):
    b, o = kvaddr(order[n]); return f"ds_read_b128 {V(KF,4)}, v{vKA+b} offset:{o}"
def rdV(n, h):
    b, o = kvaddr(order[n]); return f"ds_read_b128 {V(V1 if h else V0,4)}, v{vVA+b} offset:{o+544*h}"
def smf(o, a, b):
    A(f"v_smfmac_f32_32x32x32_bf16 {V(o,16)}, {V(a,4)}, {V(b,8)}, v{vIDX}")


stash = []
for i in range(16): stash.append(lambda i=i: ld4(V(WOR + 4 * i, 4), vWo, SWS, 1024 * i))
for i in range(2): stash.append(lambda i=i: ld4(V(XR + 4 * i, 4), vXO, SX, 32 * i, ""))
for i in range(4): stash.append(lambda i=i: ld4(V(100 + 4 * i, 4), vCS, SWS, 2048 * (i >> 1) + 16 * (i & 1)))
for i in range(64): stash.append(lambda i=i: ld4(AR(4 * i, 4), vL16b if i & 1 else vL16, SWQ, 1024 * (i >> 1)))
for i in range(8): stash.append(lambda i=i: ld4(V(W2A + 4 * i, 4), vW2, SWS, 1024 * i))
vm_after_dma = [0]


def wg_check(first):
    for i in range(4):
        if i == 0: A(f"v_xor_b32 v14, s{sFV}, v100")
        else: A(f"v_bitop3_b32 v14, v{100+i}, s{sFV}, v14 bitop3:0xbe")
    A(f"v_cmp_lt_u32 vcc, 15, v14\nv_cmp_ne_u32 s[86:87], 0, v14\ns_cmp_eq_u64 vcc, 0")


def extras(n, pos):
    if n == 7 and pos == 1:
        A(f"buffer_load_dwordx4 v[100:103], v121, {srd(SWS)}, 0 offen sc1")
    if 8 <= n < 16:
        kvdma(17 + 2 * (n - 8) + pos)
    if n == 12 and pos == 1:
        wvm(10)
        wg_check(True)
        A("s_cbranch_scc0 L_wfslow\nL_wfok:")
        A(f"s_lshl_b32 s88, s{sG}, 1\ns_lshr_b64 s[86:87], s[86:87], s88\ns_and_b32 s86, s86, 3")
        A(f"s_cselect_b32 s{sSame}, 0, {0 if OPT['force_sc1'] else 1}")
    if 13 <= n < 16 and (n - 13) * 2 + pos < 5 and not OPT['notouch']:
        A(f"buffer_load_dword v14, v{116 + (n-13)*2 + pos}, {srd(SWS)}, 0 offen sc1")
        if n == 15: vm_after_dma[0] += 0
    if n >= 16 and stash:
        f = stash.pop(0)
        if not OPT['nostash']:
            f(); vm_after_dma[0] += 1


def tile(sa, sb, oprev, o, q, ins, first=False, last=False):
    for i in range(16):
        A(f"v_exp_f32 v{sa+i}, v{sa+i}")
        if i == 1:
            if not first: smf(oprev, V1, sb + 8)
            ins[0]()
        elif i == 4:
            if not last: mf32(sb, V(KF, 4), V(q, 4), 0)
            ins[1]()
        elif i == 9:
            smf(o, V0, sa)
            ins[2]()


A(rdK(0)); A(rdV(0, 0)); wlg(1)
mf32(S0, V(KF, 4), V(Q0, 4), 0)
for n in range(64):
    def a0(): wlg(0); A(rdV(n, 1))
    def a1():
        if n == 7: wvm(0); A("s_barrier")
        if n == 31: wvm(vm_after_dma[0]); A("s_barrier")
        if n < 63: A(rdK(n + 1))
    def a2(): wlg(1 if n < 63 else 0); extras(n, 0)
    def b0():
        wlg(0)
        if OPT['tsa'] == 1 and n % 8 == 7 and n < 63: ts()
        extras(n, 1)
    def b1(): pass
    def b2():
        if n < 63: A(rdV(n + 1, 0))
    tile(S0, S1, O1, O0, Q1, (a0, a1, a2), first=(n == 0))
    tile(S1, S0, O0, O1, Q0, (b0, b1, b2), last=(n == 63))
assert not stash
smf(O1, V1, S1 + 8)
ts()

t = Asm(); A_main = A; A = t
A(f"L_wfslow:\ns_mov_b32 s{sCnt}, {SPIN}\nL_wfloop:")
A(f"buffer_load_dwordx4 v[100:103], v121, {srd(SWS)}, 0 offen sc1\ns_sub_u32 s{sCnt}, s{sCnt}, 1\ns_cbranch_scc1 L_wfok")
wvm(0); wg_check(False)
A("s_cbranch_scc0 L_wfloop\ns_branch L_wfok")
tail_code.append(t.text()); A = A_main

A("s_mov_b32 s94, 0x21800000\ns_mov_b32 s95, 0x5d800000")
for i in range(8):
    o = (O0 if i < 4 else O1) + 2 * (i & 3)
    if i == 0: A(f"v_pk_mul_f32 v[10:11], {V(o,2)}, 0")
    else: A(f"v_pk_fma_f32 v[10:11], {V(o,2)}, 0, v[10:11]")
A(f"""v_add_f32 v10, v10, v11
v_add_f32 v11, v10, v{O0+8}
v_add_f32 v12, v10, v{O1+8}
v_cmp_le_f32 vcc, s94, v11
v_cmp_ge_f32 s[86:87], s95, v11
v_cmp_le_f32 s[88:89], s94, v12
v_cmp_ge_f32 s[100:101], s95, v12
s_and_b64 vcc, vcc, s[86:87]
s_and_b64 s[88:89], s[88:89], s[100:101]
s_and_b64 vcc, vcc, s[88:89]
s_cmp_eq_u64 vcc, -1
{'s_branch' if OPT['force_fb'] else 's_cbranch_scc0'} L_fb
L_fbdone:
v_rcp_f32 v10, v{O0+8}
v_rcp_f32 v12, v{O1+8}
s_lshl_b32 s86, s{sM}, 2
s_add_u32 s86, s86, s{sW}
s_lshl_b32 s86, s86, 11""")
for qt, o in enumerate((O0, O1)):
    for p in range(4):
        A(f"v_pk_mul_f32 {V(o+2*p,2)}, {V(o+2*p,2)}, {V(10+2*qt,2)} op_sel_hi:[1,0]")
    for p in range(4):
        A(f"v_cvt_pk_bf16_f32 v{16+4*qt+p}, v{o+2*p}, v{o+2*p+1}")
A(f"v_mov_b32 v10, s{sTAG}")
gstores([f"buffer_store_dwordx4 v[16:19], v{vL16}, {srd(SGA)}, s86 offen",
         f"buffer_store_dwordx4 v[20:23], v{vL16}, {srd(SGA)}, s86 offen offset:1024"] + flag_lines(0))
A("s_barrier")
ts()

t = Asm(); A_main = A; A = t
A("L_fb:")
A.fence()
for qt, (q, o) in enumerate(((Q0, O0), (Q1, O1))):
    l1, l2 = lab("fbm"), lab("fbs")
    A(f"v_mov_b32 v10, 0xff800000\nv_mov_b32 v11, v{vL16}\ns_mov_b32 s{sCnt}, 64\n{l1}:")
    A(f"ds_read_b128 {V(KF,4)}, v11\nv_add_u32 v11, {SLOT}, v11"); wlg(0)
    mf32(S0, V(KF, 4), V(q, 4), 0)
    for i in range(8): A(f"v_max3_f32 v10, v{S0+2*i}, v{S0+2*i+1}, v10")
    A(f"s_sub_u32 s{sCnt}, s{sCnt}, 1\ns_cmp_lg_u32 s{sCnt}, 0\ns_cbranch_scc1 {l1}")
    A("v_mov_b32 v11, v10\nv_permlane32_swap_b32 v10, v11\nv_max_f32 v10, v10, v11")
    for i in range(16): A(f"v_mov_b32 v{o+i}, 0")
    A(f"v_mov_b32 v11, v{vL16}\nv_mov_b32 v12, v{vVA}\ns_mov_b32 s{sCnt}, 64\n{l2}:")
    A(f"ds_read_b128 {V(KF,4)}, v11\nds_read_b128 {V(V0,4)}, v12\nds_read_b128 {V(V1,4)}, v12 offset:544")
    A(f"v_add_u32 v11, {SLOT}, v11\nv_add_u32 v12, {SLOT}, v12"); wlg(0)
    mf32(S0, V(KF, 4), V(q, 4), 0)
    for i in range(16): A(f"v_sub_f32 v{S0+i}, v{S0+i}, v10")
    for i in range(16): A(f"v_exp_f32 v{S0+i}, v{S0+i}")
    smf(o, V0, S0); smf(o, V1, S0 + 8)
    A(f"s_sub_u32 s{sCnt}, s{sCnt}, 1\ns_cmp_lg_u32 s{sCnt}, 0")
    A.fence()
    A(f"s_cbranch_scc1 {l2}")
A("s_branch L_fbdone")
tail_code.append(t.text()); A = A_main

for tl in range(2):
    b = 100 + 8 * tl
    A(f"""v_pk_add_f32 {V(b,2)}, {V(b,2)}, {V(b+2,2)}
    v_pk_add_f32 {V(b+4,2)}, {V(b+4,2)}, {V(b+6,2)}
    v_pk_add_f32 {V(b,2)}, {V(b,2)}, {V(b+4,2)}
    v_add_f32 v{b}, v{b}, v{b+1}
    v_mov_b32 v{b+1}, v{b}
    v_permlane32_swap_b32 v{b}, v{b+1}
    v_add_f32 v{b}, v{b}, v{b+1}
    v_and_b32 v{b+1}, 0xffff0000, v{b}
    v_sub_f32 v{b}, v{b}, v{b+1}
    v_cvt_pk_bf16_f32 v{CA+tl}, v{b+1}, v{b}""")
for i in range(8):
    A(f"v_lshlrev_b32 v{ACC+i}, 16, v{XR+i}\nv_and_b32 v{ACC+16+i}, 0xffff0000, v{XR+i}")
    A(f"v_mov_b32 v{ACC+8+i}, 0\nv_mov_b32 v{ACC+24+i}, 0")
A(f"""s_lshl_b32 s86, s{sW}, 14
s_lshr_b32 s95, s{sW}, 1
s_lshl_b32 s87, s95, 10
s_add_u32 s86, s86, s87
v_add_u32 v11, s86, v{vL16}
v_xor_b32 v12, 0x400, v11""")
for x in range(1, 4):
    A(f"s_xor_b32 s86, s{sW}, {x}\ns_mul_i32 s86, s86, 12288\ns_add_u32 s86, s86, {4096*(x-1)}\nv_add_u32 v{1+x}, s86, v{vL16}")
A(f"""s_mul_i32 s86, s{sW}, 12288
v_add_u32 v5, s86, v{vL16}
s_lshl_b32 s86, s95, 12
s_lshl_b32 s87, s{sM}, 1
s_and_b32 s88, s{sW}, 1
s_add_u32 s87, s87, s88
s_lshl_b32 s87, s87, 3
s_add_u32 s86, s86, s87
s_add_u32 s86, s86, {GS}
v_and_b32 v6, 31, v0
v_lshrrev_b32 v7, 5, v0
v_lshlrev_b32 v6, 7, v6
v_lshl_add_u32 v1, v7, 6, v6
v_add_u32 v1, {GS}, v1
v_lshl_add_u32 v6, v7, 2, v6
v_add_u32 v6, s86, v6""")
poll(f"buffer_load_dword v14, v{vPoll}, {srd(SWS)}, 0 offen sc1", 14)
ts()
for ks in range(8):
    for t_ in range(2): ld4(V(16 + 8 * ks + 4 * t_, 4), 11 + t_, SGA, 2048 * ks)
for ks in range(8):
    for t_ in range(2):
        wvm(15 - 2 * ks - t_)
        for ct in range(2):
            d = ACC + 32 * t_ + 16 * ct
            mf32(d, V(WOR + 8 * ks + 4 * ct, 4), V(16 + 8 * ks + 4 * t_, 4), 0 if (ks == 0 and t_ == 1) else d)


def reduce_():
    for x in (2, 3, 1):
        t_, hf = x >> 1, x & 1
        for i in range(4):
            r = ACC + 32 * t_ + 16 * (i >> 1) + 8 * hf + 4 * (i & 1)
            A(f"ds_write_b128 v{1+x}, {V(r,4)} offset:{1024*i}")
    wlg(0)
    A("s_barrier")
    for j in range(12): A(f"ds_read_b128 {V(16+4*j,4)}, v5 offset:{1024*j}")
    for x in range(3):
        for i in range(4):
            wlg(11 - 4 * x - i)
            r = ACC + 16 * (i >> 1) + 4 * (i & 1)
            for p in range(2):
                A(f"v_pk_add_f32 {V(r+2*p,2)}, {V(r+2*p,2)}, {V(16+16*x+4*i+2*p,2)}")


reduce_()
ts()
for i in range(8): A(f"v_cvt_pk_bf16_f32 v{XR+i}, v{ACC+i}, v{ACC+16+i}")
A(f"v_mov_b32 v7, s{sONE}")
for i in range(8):
    A(f"v_dot2_f32_bf16 v14, v{XR+i}, v7, {'0' if i == 0 else 'v14'}")
    A(f"v_dot2_f32_bf16 v15, v{XR+i}, v{XR+i}, {'0' if i == 0 else 'v15'}")
A("v_permlane32_swap_b32 v14, v15\nv_add_f32 v14, v14, v15")
gstores([f"buffer_store_dwordx4 {V(XR,4)}, v{vL16}, {srd(SGA)}, s{sHS} offen",
         f"buffer_store_dwordx4 {V(XR+4,4)}, v{vL16}, {srd(SGA)}, s{sHS} offen offset:2048",
         f"buffer_store_dword v14, v6, {srd(SGA)}, 0 offen"] + flag_lines(1))
ts()
A(f"""s_mul_i32 s86, s{sM}, 7
s_lshl_b32 s87, s{sW}, 1
s_add_u32 s86, s86, s87
s_lshl_b32 s86, s86, 12
s_add_u32 s86, s86, {GF}
v_add_u32 v6, s86, v{vL16}
s_add_u32 s86, s86, 4096
s_cmp_eq_u32 s{sW}, 3
s_cselect_b32 s86, 0x40000000, s86
v_add_u32 v7, s86, v{vL16}
s_mul_i32 s86, s{sW}, 57344
s_lshl_b32 s87, s95, 10
s_add_u32 s86, s86, s87
s_add_u32 s86, s86, {GF}
v_add_u32 v11, s86, v{vL16}
v_xor_b32 v12, 0x400, v11
v_add_u32 v15, {HB}, v{vL16}
s_cmp_eq_u32 s95, 0
s_cselect_b64 s[100:101], 0, -1
s_lshl_b32 s86, s{sW}, 14
s_add_u32 m0, s86, {HB}""")
poll(f"buffer_load_dword v14, v{vPoll}, {srd(SWS)}, 0 offen offset:128 sc1", 14)
ts()
for i in range(16):
    if i and i & 3 == 0: A("s_add_u32 m0, m0, 4096")
    A(f"buffer_load_dwordx4 v{vL16}, {srd(SGA)}, m0 offen offset:{(i&3)*1024} sc1 lds")
wvm(0)
A("s_barrier")
ts()

for i in range(8): ld4(V(48 + 4 * i, 4), 1, SGA, 4096 * (i >> 2) + 16 * (i & 3))
fill = []


def stats_ops(tt):
    b = 48 + 16 * tt
    L = []
    for a, c in ((0, 2), (4, 6), (8, 10), (12, 14), (0, 4), (8, 12), (0, 8)):
        L.append(f"v_pk_add_f32 {V(b+a,2)}, {V(b+a,2)}, {V(b+c,2)}")
    L += ["s_nop 0", f"v_permlane32_swap_b32 v{b}, v{b+1}", f"v_add_f32 v{b}, v{b}, v{b+1}", f"v_mov_b32 v{b+1}, v{b}",
          "s_nop 0", f"v_permlane32_swap_b32 v{b}, v{b+1}",
          f"v_mul_f32 v{b}, 0xbb000000, v{b}", f"v_mul_f32 v{b+2}, v{b}, v{b}",
          f"v_fma_f32 v{b+1}, v{b+1}, s94, -v{b+2}", f"v_max_f32 v{b+1}, 0, v{b+1}",
          f"v_add_f32 v{b+1}, 0x3727c5ac, v{b+1}", f"v_rsq_f32 v{b+1}, v{b+1}",
          f"v_and_b32 v{b+2}, 0xffff0000, v{b}", f"v_sub_f32 v{b+3}, v{b}, v{b+2}",
          f"v_cndmask_b32 v{b+2}, v{b+2}, v{b+3}, s[{sHI}:{sHI+1}]",
          f"v_cvt_pk_bf16_f32 v{b}, v{b+2}, v{b+2}"]
    return L


A("s_mov_b32 s94, 0x3b000000")
fill0 = stats_ops(0) + stats_ops(1) + [f"v_cndmask_b32 v{RS}, v49, v65, s[100:101]",
        "v_mov_b32 v56, v48", "v_mov_b32 v60, v64", f"v_mov_b32 v48, v{CA}", f"v_mov_b32 v52, v{CA+1}"]
fill0 += [f"v_mov_b32 v{r}, 0" for r in (49, 50, 51, 53, 54, 55, 57, 58, 59, 61, 62, 63)]


def post_ops(tt):
    L = []
    for tl in range(2):
        for p in range(8):
            r = ACC + 32 * tt + 16 * tl + 2 * p
            L.append(f"v_cvt_pk_bf16_f32 v{64+8*tl+p}, v{r}, v{r+1}")
        for p in range(8):
            L.append(f"v_pk_max_i16 v{64+8*tl+p}, v{64+8*tl+p}, 0")
    return L


def f_stores(tt):
    return [f"buffer_store_dwordx4 {V(64+8*tl+4*s,4)}, v{6+tl}, {srd(SGA)}, 0 offen offset:{2048*s+1024*tt}"
            for tl in range(2) for s in range(2)]


D = 6
hrd = lambda j: A(f"ds_read_b128 {V(16+4*(j&7),4)}, v15 offset:{2048*(j&31)+1024*(j>>5)}")
for j in range(D): hrd(j)
fill1 = post_ops(0)
for j in range(64):
    tt, ks = j >> 5, j & 31
    wlg(min(D - 1, 63 - j))
    for tl in range(2):
        d = ACC + 32 * tt + 16 * tl
        mf32(d, AR(8 * ks + 4 * tl, 4), V(16 + 4 * (j & 7), 4), 0 if ks == 0 else d)
        if tl == 0 and j + D < 64: hrd(j + D)
        if tt == 0:
            if tl == 1 and ks < 16: ld4(V(WOR + 4 * ks, 4), vW2, SWS, 1024 * (8 + ks))
            if ks == 16 and tl == 0: wvm(16)
            if ks >= 16:
                for _ in range(3):
                    if fill0: A(fill0.pop(0))
        else:
            if 1 <= ks < 17: ld4(AR(8 * (ks - 1) + 4 * tl, 4), vW2, SWS, 1024 * (24 + 2 * (ks - 1) + tl))
            if ks >= 4:
                for _ in range(2):
                    if fill1: A(fill1.pop(0))
            if ks == 17 and tl == 1:
                assert not fill1
                gstores(f_stores(0))
    if ks == 31:
        assert not fill0
        for tl in range(2):
            d = ACC + 32 * tt + 16 * tl
            mf32(d, V(48 + 4 * tl, 4), V(56 + 4 * tt, 4), d)
for l in post_ops(1): A(l)
gstores(f_stores(1) + flag_lines(2))
ts()
poll(f"buffer_load_dword v14, v{vPoll}, {srd(SWS)}, 0 offen offset:256 sc1", 14)
ts()

def breg(bi):
    if bi < 32: return AR(128 + 4 * bi, 4)
    if bi < 48: return V(16 + 4 * (bi - 32), 4)
    return AR(128 + 4 * (bi - 48), 4)
def areg(fi):
    if fi < 8: return V(W2A + 4 * fi, 4)
    if fi < 24: return V(WOR + 4 * (fi - 8), 4)
    return AR(4 * (fi - 24), 4)
fld = lambda bi: ld4(breg(bi), 11 + (bi & 1), SGA, 2048 * (bi >> 1))
for bi in range(48): fld(bi)
issued = 48
fill2 = []
for i in range(8):
    fill2 += [f"v_lshlrev_b32 v{W2A+i}, 16, v{XR+i}", f"v_and_b32 v{W2A+8+i}, 0xffff0000, v{XR+i}"]
for ks in range(28):
    for t_ in range(2):
        wvm(issued - (2 * ks + t_ + 1))
        for ct in range(2):
            d = ACC + 32 * t_ + 16 * ct
            mf32(d, areg(2 * ks + ct), breg(2 * ks + t_), 0 if ks == 0 else d)
            if ks >= 8 and fill2: A(fill2.pop(0))
    if 1 <= ks <= 4:
        fld(issued); fld(issued + 1); issued += 2
reduce_()
ts()
for i in range(8):
    A(f"v_fma_f32 v{ACC+i}, v{ACC+i}, v{RS}, v{W2A+i}")
    A(f"v_fma_f32 v{ACC+16+i}, v{ACC+16+i}, v{RS}, v{W2A+8+i}")
    A(f"v_cvt_pk_bf16_f32 v{XR+i}, v{ACC+i}, v{ACC+16+i}")
    if i & 3 == 3:
        A(f"buffer_store_dwordx4 {V(XR+i-3,4)}, v{vXO}, {srd(SOUT)}, 0 offen offset:{32*(i>>2)}")
A(f"""s_or_b32 s86, s2, s{sW}
s_cmp_eq_u32 s86, 0
s_cbranch_scc0 L_noepoch
s_mov_b64 exec, 1
buffer_store_dword v10, off, {srd(SWS)}, 0 sc1
s_mov_b64 exec, -1
L_noepoch:""")
if TS:
    wvm(0); ts()
    A(f"v_writelane_b32 v{vTS}, s{sSame}, 62\nv_writelane_b32 v{vTS}, s{sFV}, 63")
    A(f"""s_lshl_b32 s86, s2, 2
    s_add_u32 s86, s86, s{sW}
    s_lshl_b32 s86, s86, 8
    s_add_u32 s86, s86, {TSA}
    v_lshlrev_b32 v11, 2, v0
    buffer_store_dword v{vTS}, v11, {srd(SWS)}, s86 offen""")
    A(f"""s_memrealtime s[98:99]
    v_readlane_b32 s86, v{vTS}, 0
    v_readlane_b32 s87, v{vTS}, 61
    s_waitcnt lgkmcnt(0)
    s_sub_u32 s87, s98, s87
    v_subrev_u32 v12, s86, v{vTS}
    v_writelane_b32 v12, s87, 0
    s_lshl_b32 s86, s2, 2
    s_add_u32 s86, s86, s{sW}
    s_cmp_eq_u32 s86, {4*OPT['dbgwg']}
    s_cbranch_scc0 L_nodbg""")
    mksrd(SPS, "s58", "s59", 256)
    A(f"buffer_store_dword v12, v11, {srd(SPS)}, 0 offen\nL_nodbg:")
A("s_endpgm")

ref = open(f"cdna_kernels/{NAME}.s.ref").read().split("\n")
head = [l for l in ref if l.startswith(";") and "@launch" not in l][:12]
out = "\n".join(head) + f"\n; @launch grid=(256,1,1) block=(256,1,1) lds={LDSSZ}\n"
out += f""".amdgcn_target "amdgcn-amd-amdhsa--gfx950"
.text
.globl {NAME}_kernel
.p2align 8
.type {NAME}_kernel,@function
{NAME}_kernel:
"""
out += A.text() + "\n".join(tail_code) + "\nL_end:\n    s_endpgm\n"
out += f""".section .rodata,"a"
.p2align 6
.amdhsa_kernel {NAME}_kernel
  .amdhsa_next_free_vgpr 512
  .amdhsa_next_free_sgpr 102
  .amdhsa_accum_offset 256
  .amdhsa_group_segment_fixed_size 0
  .amdhsa_kernarg_size 88
  .amdhsa_user_sgpr_count 2
  .amdhsa_user_sgpr_kernarg_segment_ptr 1
  .amdhsa_system_sgpr_workgroup_id_x 1
  .amdhsa_float_denorm_mode_32 3
.end_amdhsa_kernel
"""
open(sys.argv[1], "w").write(out)
print("instructions:", sum(1 for i in A.ins if i.kind != "meta"), "auto nop states:", A.nops, "ts:", nts[0])
```
